```python
import torch

def _softmax(x, axis=-1):
    return torch.softmax(x, dim=axis)

def _gelu(x):
    return torch.nn.functional.gelu(x, approximate='tanh')

def _silu(x):
    return torch.nn.functional.silu(x)

def _sigmoid(x):
    return torch.sigmoid(x)

def _layernorm(x, axis=-1, eps=1e-05):
    m = x.mean(dim=axis, keepdim=True)
    v = x.var(dim=axis, keepdim=True, unbiased=False)
    return (x - m) / torch.sqrt(v + eps)

def _scatter_add(tgt, idx, src, axis=0):
    return tgt.clone().index_add_(axis, idx, src)

def _segment_sum(src, seg, n):
    out = torch.zeros((n,) + src.shape[1:], dtype=src.dtype)
    return out.index_add_(0, seg, src)

def _pad(x, pw):
    flat = tuple((v for pair in reversed(pw) for v in pair))
    return torch.nn.functional.pad(x, flat)
kernel_name = 'adaLN_cond__sliding_block__mixer_channel_mlp__prompt'

def setup_inputs():

    _w = lambda a: (lambda t: t.to(torch.bfloat16) if t.is_floating_point() else t)(torch.as_tensor(a))

    def _A_setup():
        B, S, D = (1, 2048, 640)
        return {'x': _w((lambda *s: torch.randn(*s, dtype=torch.bfloat16) * 0.05)(B, S, D)), 'wqkv': _w((lambda *s: torch.randn(*s, dtype=torch.bfloat16) * 0.05)(D, 3 * D)), 'wo': _w((lambda *s: torch.randn(*s, dtype=torch.bfloat16) * 0.05)(D, D))}
    _A_in = _A_setup()

    def _B_setup():
        B, S, D, F = (1, 2048, 640, 1536)
        return {'x': _w((lambda *s: torch.randn(*s, dtype=torch.bfloat16) * 0.05)(B, S, D)), 'w1': _w((lambda *s: torch.randn(*s, dtype=torch.bfloat16) * 3.2)(D, F) * D ** (-0.5)), 'b1': _w((lambda *s: torch.randn(*s, dtype=torch.bfloat16) * 1.6)(F)), 'w2': _w((lambda *s: torch.randn(*s, dtype=torch.bfloat16) * 0.4)(F, D) * F ** (-0.5)), 'b2': _w((lambda *s: torch.randn(*s, dtype=torch.bfloat16) * 0.8)(D))}
    _B_in = _B_setup()
    return {'A_x': _A_in['x'], 'A_wqkv': _A_in['wqkv'], 'A_wo': _A_in['wo'], 'B_x': _B_in['x'], 'B_w1': _B_in['w1'], 'B_b1': _B_in['b1'], 'B_w2': _B_in['w2'], 'B_b2': _B_in['b2'], 'c': _w((lambda *s: torch.randn(*s, dtype=torch.bfloat16) * 0.1)(1, 640) * 8.0), 'w_mod': _w((lambda *s: torch.randn(*s, dtype=torch.bfloat16) * 0.1)(640, 6 * 640) * 640 ** (-0.5) * 8.0)}

def reference(A_x, A_wqkv, A_wo, B_x, B_w1, B_b1, B_w2, B_b2, c, w_mod):

    def _A_ref(x, wqkv, wo):
        B, S, D = x.shape
        H = 32
        Dh = D // H
        W = 256
        qkv = (lambda x, *d: x.permute(*d))((x @ wqkv).reshape(B, S, 3, H, Dh), 2, 0, 3, 1, 4)
        q, k, v = (qkv[0], qkv[1], qkv[2])
        scores = torch.einsum('bhqd,bhkd->bhqk', q, k) * Dh ** (-0.5)
        idx = torch.arange(S)
        mask = (idx[:, None] - idx[None, :] >= 0) & (idx[:, None] - idx[None, :] < W)
        scores = torch.where(mask[None, None], scores, -1000000000.0)
        p = _softmax(scores, axis=-1)
        o = torch.einsum('bhqk,bhkd->bhqd', p, v)
        return (lambda x, *d: x.permute(*d))(o, 0, 2, 1, 3).reshape(B, S, D) @ wo

    def _B_ref(x, w1, b1, w2, b2):
        y = _layernorm(x, axis=-1)
        h = _gelu(torch.einsum('bsd,df->bsf', y, w1) + b1)
        return torch.einsum('bsf,fd->bsd', h, w2) + b2
    x = A_x
    mod = (_silu(c) @ w_mod).reshape(c.shape[0], 6, 1, -1)
    sa, ca, ga, sb, cb, gb = (mod[:, 0].clone(), mod[:, 1].clone(), mod[:, 2].clone(), mod[:, 3].clone(), mod[:, 4].clone(), mod[:, 5].clone())
    h = _layernorm(x, axis=-1) * (1 + ca) + sa
    x = x + ga * _A_ref(h, A_wqkv, A_wo)
    h = _layernorm(x, axis=-1) * (1 + cb) + sb
    x = x + gb * _B_ref(h, B_w1, B_b1, B_w2, B_b2)
    return x
```

```python
NAME = 'adaLN_cond__sliding_block__mixer_channel_mlp__prompt'

WS_EPOCH = 0
FS = 128
FL_BASE = 4096
FL_P0 = FL_BASE
FL_QKV = FL_BASE + 32768
FL_O = FL_BASE + 65536
FL_X1 = FL_BASE + 98304
FL_HH = FL_BASE + 131072
FL_REL = FL_BASE + 163840
WS_MODP = 0x40000
WS_STATS = 0x60000
WS_TS = 0xE0000
WS_XN = 0x100000
WS_QKV = 0x400000
WS_OF = 0xC00000
WS_X1G = 0xF00000
WS_HH = 0x1200000
WS_WOF = 0x1800000
WS_W1F = 0x1900000
WS_W2F = 0x1B00000
WS_SIZE = 0x2000000

S_X, S_WQKV, S_WO, S_W1, S_W2, S_WMOD, S_OUT, S_WS, S_C, S_B1, S_B2 = 8, 12, 16, 20, 24, 28, 32, 36, 40, 44, 48
sTAG = 's52'
sI = 's53'
sJ = 's54'
sW = 's55'
sB = 's56'


def srd(n):
    return f's[{n}:{n + 3}]'


def v4(n):
    return f'v[{n}:{n + 3}]'


def v2(n):
    return f'v[{n}:{n + 1}]'


def a4(n):
    return f'a[{n}:{n + 3}]'


def vr(n, k):
    return f'v[{n}:{n + k - 1}]' if k > 1 else f'v{n}'


def ar(n, k):
    return f'a[{n}:{n + k - 1}]' if k > 1 else f'a{n}'


LDS_SIZE = 163840
```

```python
import re

REG_RE = re.compile(r'^(-|\|)?(abs\()?([vas])(\d+|\[\d+:\d+\])\)?\|?$')


def regs_of(tok):
    tok = tok.strip()
    if tok in ('vcc', 'exec'):
        return [tok]
    if tok in ('vcc_lo', 'vcc_hi'):
        return ['vcc']
    if tok in ('exec_lo', 'exec_hi'):
        return ['exec']
    if tok == 'm0':
        return ['m0']
    m = REG_RE.match(tok)
    if not m:
        return []
    f, n = m.group(3), m.group(4)
    if n[0] == '[':
        lo, hi = n[1:-1].split(':')
        return [f'{f}{i}' for i in range(int(lo), int(hi) + 1)]
    return [f + n]


def split_ops(s):
    out, depth, cur = [], 0, ''
    for ch in s:
        if ch in '[(':
            depth += 1
        if ch in '])':
            depth -= 1
        if ch == ',' and depth == 0:
            out.append(cur.strip())
            cur = ''
        else:
            cur += ch
    if cur.strip():
        out.append(cur.strip())
    return out


TRANS = ('v_exp_f32', 'v_log_f32', 'v_rcp_f32', 'v_rsq_f32', 'v_sqrt_f32', 'v_sin_f32', 'v_cos_f32')
RMW = ('v_fmac_', 'v_pk_fmac', 'v_dot2c', 'v_writelane')


class Ins:
    __slots__ = ('text', 'mn', 'defs', 'uses', 'kind', 'passes', 'srcc', 'ab', 'dpp', 'wide_store', 'ws', 'size')

    def __init__(self, text):
        self.text = text
        t = text.strip()
        sp = t.split(None, 1)
        mn = sp[0]
        self.mn = mn
        rest = sp[1] if len(sp) > 1 else ''
        ops = split_ops(rest)
        mods = ''
        if ops:
            last = ops[-1].split(None, 1)
            if len(last) > 1:
                ops[-1] = last[0]
                mods = last[1]
        self.defs, self.uses = [], []
        self.kind = 'other'
        self.passes = 0
        self.srcc, self.ab = [], []
        self.dpp = ('_dpp' in mn) or ('quad_perm' in mods) or ('row_' in mods)
        self.wide_store = False
        self.ws = 1
        R = regs_of
        if mn.startswith('v_mfma'):
            self.kind = 'mfma'
            self.passes = 8 if '32x32x16' in mn else 4 if '16x16x32' in mn else None
            assert self.passes, mn
            self.defs = R(ops[0])
            self.ab = R(ops[1]) + R(ops[2])
            self.srcc = R(ops[3])
            self.uses = self.ab + self.srcc
        elif mn.startswith('v_cmp'):
            self.kind = 'valu'
            self.defs = R(ops[0])
            self.uses = sum((R(o) for o in ops[1:]), [])
            if mn.startswith('v_cmpx'):
                self.defs = self.defs + ['exec']
        elif mn.startswith('v_readfirstlane') or mn.startswith('v_readlane'):
            self.kind = 'valu'
            self.defs = R(ops[0])
            self.uses = sum((R(o) for o in ops[1:]), [])
        elif mn.startswith('v_permlane'):
            self.kind = 'valu'
            self.defs = R(ops[0]) + R(ops[1])
            self.uses = list(self.defs)
        elif mn.startswith('v_'):
            self.kind = 'trans' if any(mn.startswith(x) for x in TRANS) else 'valu'
            self.defs = R(ops[0])
            srcs = ops[1:]
            if mn.startswith(('v_add_co', 'v_sub_co', 'v_addc_co', 'v_subb_co', 'v_subrev_co')):
                self.defs += R(ops[1])
                srcs = ops[2:]
            self.uses = sum((R(o) for o in srcs), [])
            if any(mn.startswith(x) for x in RMW):
                self.uses += self.defs
            if mn.startswith('v_cndmask') and len(ops) == 3:
                self.uses.append('vcc')
            if self.dpp:
                self.uses += self.defs
        elif mn.startswith('ds_read') or mn.startswith('ds_bpermute') or mn.startswith('ds_swizzle') or mn.startswith('ds_permute'):
            self.kind = 'ds_read'
            self.defs = R(ops[0])
            self.uses = sum((R(o) for o in ops[1:]), [])
        elif mn.startswith('ds_write') or mn.startswith('ds_add'):
            self.kind = 'ds_write'
            self.uses = sum((R(o) for o in ops), [])
        elif mn.startswith('buffer_load') or mn.startswith('global_load'):
            allm = mods + ' ' + (ops[-1] if ops else '')
            if re.search(r'\blds\b', mods):
                self.kind = 'dma'
                self.uses = sum((R(o) for o in ops), []) + ['m0']
            else:
                self.kind = 'vm_load'
                self.defs = R(ops[0])
                self.uses = sum((R(o) for o in ops[1:]), [])
                if 'd16' in mn:
                    self.uses += self.defs
        elif mn.startswith('buffer_store') or mn.startswith('global_store'):
            self.kind = 'vm_store'
            self.uses = sum((R(o) for o in ops), [])
            self.wide_store = mn.endswith('x4') or mn.endswith('x3')
        elif mn.startswith('buffer_atomic') or mn.startswith('global_atomic'):
            self.kind = 'vm_store'
            self.uses = sum((R(o) for o in ops), [])
        elif mn.startswith('buffer_wbl2') or mn.startswith('buffer_inv'):
            self.kind = 'vm_store'
        elif mn.startswith('s_load') or mn.startswith('s_memtime') or mn.startswith('s_memrealtime'):
            self.kind = 'smem'
            self.defs = R(ops[0])
            self.uses = sum((R(o) for o in ops[1:]), [])
        elif mn == 's_nop':
            self.kind = 'nop'
            self.ws = int(ops[0], 0) + 1
        elif mn in ('s_waitcnt', 's_barrier', 's_sleep', 's_setprio', 's_endpgm'):
            self.kind = mn[2:]
        elif mn.startswith('s_cbranch') or mn == 's_branch':
            self.kind = 'branch'
            if 'vcc' in mn:
                self.uses = ['vcc']
            if 'exec' in mn:
                self.uses = ['exec']
            if 'scc' in mn:
                self.uses = ['scc']
        elif mn.startswith('s_cmp') or mn.startswith('s_bitcmp'):
            self.kind = 'salu'
            self.defs = ['scc']
            self.uses = sum((R(o) for o in ops), [])
        elif mn.startswith('s_'):
            self.kind = 'salu'
            self.defs = R(ops[0])
            self.uses = sum((R(o) for o in ops[1:]), [])
            if 'saveexec' in mn:
                self.defs += ['exec', 'scc']
                self.uses += ['exec']
            if mn.startswith(('s_add', 's_sub', 's_and', 's_or', 's_xor', 's_lshl', 's_lshr', 's_ashr', 's_min', 's_max', 's_not', 's_andn2', 's_bfe', 's_mul_hi')):
                if not mn.startswith('s_mul_hi'):
                    self.defs += ['scc']
            if mn.startswith(('s_addc', 's_subb', 's_cselect', 's_cmov')):
                self.uses += ['scc']
            if mn.startswith('s_addk') or mn.startswith('s_mulk'):
                self.uses += self.defs
        else:
            raise ValueError('unknown instruction: ' + text)
        if self.kind in ('valu', 'trans', 'vm_load', 'vm_store', 'dma', 'ds_read', 'ds_write', 'mfma'):
            pass


def is_vec(r):
    return r[0] in 'va' and r not in ('vcc',)


class E:
    def __init__(self, check=True):
        self.out = []
        self.vm_n = 0
        self.lg_n = 0
        self.vm_done = 0
        self.lg_done = 0
        self.pend = {}
        self.smem_pend = set()
        self.uid = 0
        self.hist = []
        self.stat = {}

    def comment(self, s):
        self.out.append('; ' + s)

    def new_label(self, p='L'):
        self.uid += 1
        return f'{p}_{self.uid}'

    def label(self, name):
        self.out.append(name + ':')

    def raw(self, text):
        i = Ins(text)
        self.out.append(i)
        self.hist.append(i)
        if len(self.hist) > 40:
            self.hist.pop(0)
        self.stat[i.kind] = self.stat.get(i.kind, 0) + 1
        return i

    def wait(self, vm=None, lg=None):
        parts = []
        if vm is not None:
            vm = min(vm, 63)
            if self.vm_n - self.vm_done > vm:
                parts.append(f'vmcnt({vm})')
                self.vm_done = self.vm_n - vm
        if lg is not None:
            lg = min(lg, 15)
            if self.lg_n - self.lg_done > lg or (lg == 0 and self.smem_pend):
                parts.append(f'lgkmcnt({lg})')
                self.lg_done = max(self.lg_done, self.lg_n - lg)
                if lg == 0:
                    self.smem_pend.clear()
        if parts:
            self.raw('s_waitcnt ' + ' '.join(parts))
        self._clean()

    def force_wait(self, vm=None, lg=None):
        parts = []
        if vm is not None:
            parts.append(f'vmcnt({vm})')
            self.vm_done = max(self.vm_done, self.vm_n - vm)
        if lg is not None:
            parts.append(f'lgkmcnt({lg})')
            self.lg_done = max(self.lg_done, self.lg_n - lg)
            if lg == 0:
                self.smem_pend.clear()
        self.raw('s_waitcnt ' + ' '.join(parts))
        self._clean()

    def _clean(self):
        for r in list(self.pend):
            c, i = self.pend[r]
            if (c == 'vm' and i < self.vm_done) or (c == 'lg' and i < self.lg_done):
                del self.pend[r]

    def vm_token(self):
        return self.vm_n - 1

    def lg_token(self):
        return self.lg_n - 1

    def wait_vm_tok(self, tok):
        if tok is None or tok < self.vm_done:
            return
        self.wait(vm=self.vm_n - 1 - tok)

    def wait_lg_tok(self, tok):
        if tok is None or tok < self.lg_done:
            return
        self.wait(lg=self.lg_n - 1 - tok)

    def settle(self, vm=True, lg=True):
        self.wait(vm=0 if vm else None, lg=0 if lg else None)

    def assume_settled(self):
        self.vm_done = self.vm_n
        self.lg_done = self.lg_n
        self.pend.clear()
        self.smem_pend.clear()

    def _need_nops(self, i):
        need = 0
        dist = 0
        for p in reversed(self.hist):
            req = 0
            pd = set(p.defs)
            iu, idf = set(i.uses), set(i.defs)
            if p.kind in ('valu', 'trans'):
                vd = {r for r in pd if is_vec(r)}
                sd = {r for r in pd if (r[0] == 's' or r == 'vcc')}
                if i.kind == 'mfma' and vd & iu:
                    req = max(req, 2)
                if i.mn.startswith('v_permlane') and vd & iu:
                    req = max(req, 2)
                if i.dpp and vd & iu:
                    req = max(req, 2)
                if (i.mn.startswith('v_readlane') or i.mn.startswith('v_readfirstlane')) and vd & iu:
                    req = max(req, 1)
                if p.kind == 'trans' and i.kind in ('valu', 'trans', 'mfma', 'ds_write', 'vm_store') and vd & iu and i.kind != 'trans':
                    req = max(req, 1)
                if sd & iu:
                    if i.kind in ('vm_load', 'vm_store', 'dma'):
                        req = max(req, 5)
                    elif i.kind in ('valu', 'trans'):
                        req = max(req, 2)
                        if i.mn.startswith(('v_readlane', 'v_writelane')):
                            req = max(req, 4)
                    elif i.kind in ('salu', 'branch'):
                        req = max(req, 1)
                if 'exec' in pd and i.kind == 'mfma':
                    req = max(req, 4)
                if 'exec' in pd and i.dpp:
                    req = max(req, 5)
                if 'exec' in pd and (i.mn.startswith('v_readlane') or i.mn.startswith('v_readfirstlane') or i.mn.startswith('v_permlane')):
                    req = max(req, 4)
            if p.kind == 'mfma':
                big = p.passes == 8
                if i.kind == 'mfma':
                    if pd & set(i.ab):
                        req = max(req, 12 if big else 8)
                    c = set(i.srcc)
                    if pd & c:
                        if not (c == pd and i.passes == p.passes):
                            req = max(req, 10 if big else 6)
                    d = set(i.defs)
                    if (pd & d) and not (c == pd and d == pd and i.passes == p.passes):
                        req = max(req, 10 if big else 6)
                elif i.kind in ('valu', 'trans', 'ds_read', 'ds_write', 'vm_load', 'vm_store', 'dma'):
                    if pd & (iu | idf):
                        req = max(req, 12 if big else 8)
                    if i.kind in ('valu', 'trans') and set(p.srcc) & idf:
                        req = max(req, 7 if big else 3)
                    if i.kind in ('ds_read', 'vm_load') and set(p.srcc) & idf:
                        req = max(req, 7 if big else 3)
            if p.kind == 'vm_store' and p.wide_store:
                if i.kind in ('valu', 'trans') and set(p.uses) & {r for r in idf if is_vec(r)}:
                    req = max(req, 2)
                elif i.kind in ('vm_load', 'ds_read', 'mfma') and set(p.uses) & {r for r in idf if is_vec(r)}:
                    req = max(req, 1)
            if p.kind == 'salu' and 'm0' in pd and i.kind == 'dma':
                req = max(req, 1)
            if p.kind == 'salu' and 'exec' in pd and i.kind == 'mfma':
                req = max(req, 1)
            if req > dist:
                need = max(need, req - dist)
            dist += p.ws
            if dist >= 20:
                break
        return need

    def __call__(self, text, nowait=False):
        last = None
        for line in text.split('\n'):
            line = line.strip()
            if not line or line.startswith(';'):
                continue
            if line.endswith(':'):
                self.label(line[:-1])
                continue
            last = self._one(line, nowait)
        return last

    def _one(self, line, nowait):
        i = Ins(line)
        if not nowait:
            nv, nl = None, None
            touch = set(i.uses) | set(i.defs)
            for r in touch:
                if r in self.pend:
                    c, idx = self.pend[r]
                    if c == 'vm':
                        if i.kind == 'vm_load' and r in i.defs and r not in i.uses:
                            continue
                        n = self.vm_n - 1 - idx
                        nv = n if nv is None else min(nv, n)
                    else:
                        if i.kind == 'ds_read' and r in i.defs and r not in i.uses:
                            continue
                        n = self.lg_n - 1 - idx
                        nl = n if nl is None else min(nl, n)
                if r in self.smem_pend:
                    nl = 0
            if nv is not None or nl is not None:
                self.wait(vm=nv, lg=nl)
        if i.kind in ('vm_load', 'vm_store', 'dma') and self.vm_n - self.vm_done >= 63:
            self.wait(vm=62)
        if i.kind in ('ds_read', 'ds_write') and self.lg_n - self.lg_done >= 15:
            self.wait(lg=14)
        n = self._need_nops(i)
        while n > 0:
            k = min(n, 16)
            self.raw(f's_nop {k - 1}')
            n -= k
        self.out.append(i)
        self.hist.append(i)
        if len(self.hist) > 40:
            self.hist.pop(0)
        self.stat[i.kind] = self.stat.get(i.kind, 0) + 1
        if i.kind == 'vm_load':
            for r in i.defs:
                self.pend[r] = ('vm', self.vm_n)
            self.vm_n += 1
        elif i.kind in ('vm_store', 'dma'):
            self.vm_n += 1
        elif i.kind == 'ds_read':
            for r in i.defs:
                self.pend[r] = ('lg', self.lg_n)
            self.lg_n += 1
        elif i.kind == 'ds_write':
            self.lg_n += 1
        elif i.kind == 'smem':
            for r in i.defs:
                self.smem_pend.add(r)
            self.smem_pend.add('_smem')
        return i

    def text(self):
        o = []
        for x in self.out:
            if isinstance(x, Ins):
                o.append('    ' + x.text)
            else:
                o.append(x)
        return '\n'.join(o) + '\n'
```

```python
from common import *

LOG2E = 1.4426950408889634


def f2u(x):
    import struct
    return struct.unpack('<I', struct.pack('<f', x))[0]


def hexf(x):
    return hex(f2u(x))


def prologue(e, end_label):
    e(f'''
    s_cmp_ge_u32 s2, 256
    s_cbranch_scc1 {end_label}
    s_load_dwordx16 s[64:79], s[0:1], 0
    s_load_dwordx8 s[80:87], s[0:1], 64
    s_load_dwordx2 s[88:89], s[0:1], 96
    v_and_b32 v1, 63, v0
    v_lshrrev_b32 v2, 6, v0
    s_mov_b32 {sB}, s2
    s_and_b32 s57, s2, 7
    s_lshr_b32 s58, s2, 3
    v_readfirstlane_b32 {sW}, v2
    s_and_b32 {sJ}, s58, 15
    s_lshr_b32 s58, s58, 4
    s_lshl_b32 s57, s57, 1
    s_add_u32 {sI}, s57, s58
    ''')
    e.force_wait(lg=0)
    e('s_load_dword s57, s[88:89], 0')
    for (sr, p, size) in [(S_X, 64, 2621440), (S_WQKV, 66, 2457600), (S_WO, 68, 819200), (S_W1, 72, 1966080),
                          (S_W2, 76, 1966080), (S_WMOD, 82, 4915200), (S_OUT, 84, 2621440), (S_WS, 88, WS_SIZE),
                          (S_C, 80, 1280), (S_B1, 74, 3072), (S_B2, 78, 1280)]:
        e(f'''
        s_mov_b32 s{sr}, s{p}
        s_and_b32 s{sr + 1}, s{p + 1}, 0xffff
        s_mov_b32 s{sr + 2}, {size}
        s_mov_b32 s{sr + 3}, 0x20000
        ''')
    e.force_wait(lg=0)
    e(f's_add_u32 {sTAG}, s57, 0x9e3779b9')


def dpp_rowsum(e, r, tmp=None):
    for n in (8, 4, 2, 1):
        e(f'v_add_f32_dpp v{r}, v{r}, v{r} row_ror:{n} row_mask:0xf bank_mask:0xf')


LDS_MISC = 147456
LN_T = LDS_MISC
MP = LDS_MISC + 11520


def p0_ln_path(e):
    XR = 16
    XF = 40
    e(f'''
    s_lshl_b32 s57, {sI}, 7
    s_lshl_b32 s58, {sJ}, 3
    s_add_u32 s57, s57, s58            ; T0
    s_mul_i32 s58, s57, 1280
    v_lshrrev_b32 v3, 4, v0            ; r = tid>>4  (0..7)
    v_and_b32 v4, 15, v0               ; c16
    v_mul_u32_u24 v5, 1280, v3
    v_lshl_add_u32 v5, v4, 4, v5
    ''')
    for u in range(5):
        e(f'buffer_load_dwordx4 {v4(XR + 4 * u)}, v5, {srd(S_X)}, s58 offen offset:{256 * u}')
    return XR, XF


def p0_ln_compute(e, XR, XF):
    for d in range(20):
        e(f'v_lshlrev_b32 v{XF + 2 * d}, 16, v{XR + d}')
        e(f'v_and_b32 v{XF + 2 * d + 1}, 0xffff0000, v{XR + d}')
    e(f'v_pk_add_f32 v[6:7], {v2(XF)}, {v2(XF + 2)}')
    e(f'v_pk_add_f32 v[8:9], {v2(XF + 4)}, {v2(XF + 6)}')
    for d in range(4, 20, 2):
        e(f'v_pk_add_f32 v[6:7], v[6:7], {v2(XF + 2 * d)}')
        e(f'v_pk_add_f32 v[8:9], v[8:9], {v2(XF + 2 * d + 2)}')
    e('v_pk_add_f32 v[6:7], v[6:7], v[8:9]')
    e('v_add_f32 v6, v6, v7')
    dpp_rowsum(e, 6)
    e(f'v_mul_f32 v6, {hexf(-1.0 / 640)}, v6')
    for d in range(20):
        e(f'v_pk_add_f32 {v2(XF + 2 * d)}, {v2(XF + 2 * d)}, v[6:7] op_sel_hi:[1,0]')
    e(f'v_pk_mul_f32 v[8:9], {v2(XF)}, {v2(XF)}')
    e(f'v_pk_mul_f32 v[10:11], {v2(XF + 2)}, {v2(XF + 2)}')
    for d in range(2, 20, 2):
        e(f'v_pk_fma_f32 v[8:9], {v2(XF + 2 * d)}, {v2(XF + 2 * d)}, v[8:9]')
        e(f'v_pk_fma_f32 v[10:11], {v2(XF + 2 * d + 2)}, {v2(XF + 2 * d + 2)}, v[10:11]')
    e('v_pk_add_f32 v[8:9], v[8:9], v[10:11]')
    e('v_add_f32 v8, v8, v9')
    dpp_rowsum(e, 8)
    e(f'v_mov_b32 v9, {hexf(1e-5)}')
    e(f'v_mov_b32 v10, {hexf(1.0 / 640)}')
    e('v_fma_f32 v8, v8, v10, v9')
    e('v_rsq_f32 v8, v8')
    for d in range(20):
        e(f'v_pk_mul_f32 {v2(XF + 2 * d)}, {v2(XF + 2 * d)}, v[8:9] op_sel_hi:[1,0]')
    for d in range(20):
        e(f'v_cvt_pk_f16_f32 v{XR + d}, v{XF + 2 * d}, v{XF + 2 * d + 1}')
    e(f'''
    v_mul_u32_u24 v6, 144, v4
    v_lshl_add_u32 v6, v3, 4, v6
    v_add_u32 v6, {LN_T}, v6
    ''')
    for u in range(5):
        e(f'ds_write_b128 v6, {v4(XR + 4 * u)} offset:{u * 16 * 144}')


def p0_gemv_loads(e):
    WR = 16
    CR = 56
    e(f'''
    s_mul_i32 s57, {sB}, 1093
    s_lshr_b32 s57, s57, 16            ; ks = b/60
    s_mul_i32 s58, s57, 60
    s_sub_u32 s58, {sB}, s58           ; cg
    s_mul_i32 s59, s57, 160
    s_sub_u32 s60, {sW}, 2
    s_mul_i32 s60, s60, 80
    s_add_u32 s59, s59, s60            ; k0
    s_lshl_b32 s60, s59, 1
    s_mul_i32 s61, s59, 7680
    s_lshl_b32 s62, s58, 7
    s_add_u32 s61, s61, s62
    v_lshrrev_b32 v3, 3, v1            ; l>>3
    v_and_b32 v4, 7, v1
    v_mul_u32_u24 v5, 7680, v3
    v_lshl_add_u32 v5, v4, 4, v5
    v_lshlrev_b32 v6, 1, v3
    ''')
    for u in range(10):
        e(f'buffer_load_ushort v{CR + u}, v6, {srd(S_C)}, s60 offen offset:{16 * u}')
    for u in range(10):
        e(f'buffer_load_dwordx4 {v4(WR + 4 * u)}, v5, {srd(S_WMOD)}, s61 offen')
        if u < 9:
            e('s_add_u32 s61, s61, 61440')
    return WR, CR


def p0_gemv_compute(e, WR, CR):
    for u in range(10):
        e(f'v_lshlrev_b32 v{CR + u}, 16, v{CR + u}')
    for u in range(10):
        e(f'v_mul_f32 v{70 + u}, {hexf(-LOG2E)}, v{CR + u}')
    for u in range(10):
        e(f'v_exp_f32 v{70 + u}, v{70 + u}')
    for u in range(10):
        e(f'v_add_f32 v{70 + u}, 1.0, v{70 + u}')
    for u in range(10):
        e(f'v_rcp_f32 v{70 + u}, v{70 + u}')
    for u in range(10):
        e(f'v_mul_f32 v{70 + u}, v{CR + u}, v{70 + u}')
    for u in range(10):
        e(f'v_cvt_pk_bf16_f32 v{70 + u}, v{70 + u}, v{70 + u}')
    for u in range(10):
        e(f'v_lshlrev_b32 v{80 + 2 * u}, 16, v{70 + u}')
    ACC = 8
    for u in range(10):
        for d in range(4):
            t = 100 + 2 * (d & 1) + 4 * (u & 1)
            e(f'v_lshlrev_b32 v{t}, 16, v{WR + 4 * u + d}')
            e(f'v_and_b32 v{t + 1}, 0xffff0000, v{WR + 4 * u + d}')
            if u == 0:
                e(f'v_pk_mul_f32 {v2(ACC + 2 * d)}, {v2(t)}, {v2(80 + 2 * u)} op_sel_hi:[1,0]')
            else:
                e(f'v_pk_fma_f32 {v2(ACC + 2 * d)}, {v2(t)}, {v2(80 + 2 * u)}, {v2(ACC + 2 * d)} op_sel_hi:[1,0,1]')
    for k in range(8):
        e(f'v_add_f32_dpp v{ACC + k}, v{ACC + k}, v{ACC + k} row_ror:8 row_mask:0xf bank_mask:0xf')
    e(f'''
    s_sub_u32 s60, {sW}, 2
    s_lshl_b32 s60, s60, 10
    v_lshrrev_b32 v6, 4, v1
    v_lshlrev_b32 v6, 8, v6
    v_lshl_add_u32 v6, v4, 5, v6
    v_add_u32 v6, s60, v6
    v_add_u32 v6, {MP}, v6
    ds_write_b128 v6, v[8:11]
    ds_write_b128 v6, v[12:15] offset:16
    ''')


def p0_publish_stores(e):
    e(f'''
    v_lshrrev_b32 v3, 3, v1
    v_and_b32 v4, 7, v1                ; token
    v_mul_u32_u24 v5, 144, v3
    v_lshl_add_u32 v5, v4, 4, v5
    s_mul_i32 s57, {sW}, 1152
    s_add_u32 s57, s57, {LN_T}
    v_add_u32 v5, s57, v5
    v_lshrrev_b32 v6, 1, v3
    v_lshlrev_b32 v6, 10, v6
    v_and_b32 v7, 1, v3
    v_lshl_add_u32 v6, v7, 9, v6
    v_lshl_add_u32 v6, v4, 4, v6
    s_lshl_b32 s58, {sI}, 2
    s_lshr_b32 s59, {sJ}, 2
    s_add_u32 s58, s58, s59            ; tb32 = 4i + (j>>2)
    s_mul_i32 s58, s58, 40960
    s_and_b32 s59, {sJ}, 3
    s_lshl_b32 s59, s59, 7             ; (T0&31)*16 = (j&3)*8*16
    s_add_u32 s58, s58, s59
    s_lshl_b32 s59, {sW}, 12
    s_add_u32 s58, s58, s59
    s_add_u32 s58, s58, {WS_XN}
    ds_read_b128 v[8:11], v5
    ds_read_b128 v[12:15], v5 offset:{4 * 1152}
    ''')
    e(f'ds_read_b128 v[16:19], v5 offset:{8 * 1152}')
    e(f'''
    s_lshl_b32 s59, {sW}, 6
    s_add_u32 s59, s59, {MP}
    v_and_b32 v7, 15, v1
    v_lshlrev_b32 v20, 2, v7
    v_add_u32 v20, s59, v20
    ''')
    for p in range(8):
        e(f'ds_read_b32 v{24 + p}, v20 offset:{256 * p}')
    e(f'buffer_store_dwordx4 v[8:11], v6, {srd(S_WS)}, s58 offen sc1')
    e('s_add_u32 s59, s58, 16384')
    e(f'buffer_store_dwordx4 v[12:15], v6, {srd(S_WS)}, s59 offen sc1')
    e(f'''
    s_add_u32 s59, s58, 32768
    s_cmp_lt_u32 {sW}, 2
    s_cselect_b32 s59, s59, 0x7ffff000
    buffer_store_dwordx4 v[16:19], v6, {srd(S_WS)}, s59 offen sc1
    ''')
    e('v_add_f32 v24, v24, v25\n v_add_f32 v26, v26, v27\n v_add_f32 v28, v28, v29\n v_add_f32 v30, v30, v31')
    e('v_add_f32 v24, v24, v26\n v_add_f32 v28, v28, v30\n v_add_f32 v24, v24, v28')
    e(f'''
    s_mul_i32 s57, {sB}, 1093
    s_lshr_b32 s57, s57, 16
    s_mul_i32 s59, s57, 60
    s_sub_u32 s59, {sB}, s59
    s_mul_i32 s57, s57, 15360
    s_lshl_b32 s59, s59, 8
    s_add_u32 s57, s57, s59
    s_lshl_b32 s59, {sW}, 6
    s_add_u32 s57, s57, s59
    s_add_u32 s57, s57, {WS_MODP}
    v_lshlrev_b32 v7, 2, v7
    buffer_store_dword v24, v7, {srd(S_WS)}, s57 offen sc1
    ''')


N_W2, N_W1A, N_W1B, N_WOM, N_WOT = 480, 384, 96, 160, 40
U_W1A = N_W2
U_W1B = U_W1A + N_W1A
U_WOM = U_W1B + N_W1B
U_WOT = U_WOM + N_WOM
U_END = U_WOT + N_WOT


def divmod_s(e, q, r, x, d):
    m = (65536 + d - 1) // d
    for xx in range(2048):
        assert (xx * m) >> 16 == xx // d or xx >= 1200, (xx, d)
    e(f'''
    s_mul_i32 {q}, {x}, {m}
    s_lshr_b32 {q}, {q}, 16
    s_mul_i32 {r}, {q}, {d}
    s_sub_u32 {r}, {x}, {r}
    ''')


def relayout_unit(e, sU, stage):
    L16 = e.new_label('RL16')
    L32 = e.new_label('RL32')
    LD = e.new_label('RLD')
    LW2, LWOM, LWOT, LW1A, LW1B = (e.new_label(x) for x in ('RW2', 'RWOM', 'RWOT', 'RW1A', 'RW1B'))
    e(f'''
    v_lshrrev_b32 v3, 3, v1
    v_and_b32 v4, 7, v1
    v_and_b32 v5, 3, v3                ; jj&3
    v_lshrrev_b32 v6, 2, v3            ; jj>>2
    s_cmp_lt_u32 {sU}, {U_W1A}
    s_cbranch_scc1 {LW2}
    s_cmp_lt_u32 {sU}, {U_W1B}
    s_cbranch_scc1 {LW1A}
    s_cmp_lt_u32 {sU}, {U_WOM}
    s_cbranch_scc1 {LW1B}
    s_cmp_lt_u32 {sU}, {U_WOT}
    s_cbranch_scc1 {LWOM}
    s_branch {LWOT}
    ''')
    e.label(LW2)
    divmod_s(e, 's72', 's65', sU, 10)
    e(f'''
    v_lshl_add_u32 v7, v6, 3, v5
    s_lshl_b32 s64, s72, 5
    s_mov_b32 s60, 0
    s_mov_b32 s61, 4
    s_mov_b32 s62, 16
    s_mov_b32 s63, 20
    s_mov_b32 s66, {WS_W2F}
    s_mov_b32 s67, 48
    s_mov_b32 s68, s{S_W2}
    s_mov_b32 s69, s{S_W2 + 1}
    s_mov_b32 s70, s{S_W2 + 2}
    s_branch {L16}
    ''')
    e.label(LWOM)
    e(f's_sub_u32 s73, {sU}, {U_WOM}')
    divmod_s(e, 's72', 's65', 's73', 10)
    e(f'''
    v_lshl_add_u32 v7, v6, 3, v5
    s_mul_i32 s64, s72, 40
    s_mov_b32 s60, 0
    s_mov_b32 s61, 4
    s_mov_b32 s62, 20
    s_mov_b32 s63, 24
    s_mov_b32 s66, {WS_WOF}
    s_mov_b32 s67, 20
    s_mov_b32 s68, s{S_WO}
    s_mov_b32 s69, s{S_WO + 1}
    s_mov_b32 s70, s{S_WO + 2}
    s_branch {L16}
    ''')
    e.label(LWOT)
    e(f's_sub_u32 s73, {sU}, {U_WOT}')
    divmod_s(e, 's72', 's65', 's73', 10)
    e(f'''
    v_mul_u32_u24 v7, 20, v6
    v_add_u32 v7, v7, v5
    s_mul_i32 s64, s72, 160
    s_add_u32 s72, s72, 16             ; S = 16 + s'
    s_mov_b32 s60, 16
    s_mov_b32 s61, 56
    s_mov_b32 s62, 96
    s_mov_b32 s63, 136
    s_mov_b32 s66, {WS_WOF}
    s_mov_b32 s67, 20
    s_mov_b32 s68, s{S_WO}
    s_mov_b32 s69, s{S_WO + 1}
    s_mov_b32 s70, s{S_WO + 2}
    s_branch {L16}
    ''')
    e.label(L16)
    e(f'''
    s_mov_b32 s71, 0x20000
    v_mul_u32_u24 v7, 1280, v7
    v_lshl_add_u32 v7, v4, 4, v7
    s_lshl_b32 s73, s65, 7
    ''')
    for u in range(4):
        e(f'''
        s_add_u32 s74, s64, s{60 + u}
        s_mul_i32 s74, s74, 1280
        s_add_u32 s74, s74, s73
        s_add_u32 s75, {stage}, {1024 * u}
        s_mov_b32 m0, s75
        buffer_load_dwordx4 v7, s[68:71], s74 offen lds
        ''')
    e(f'''
    v_lshrrev_b32 v8, 4, v1            ; g
    v_bfe_u32 v9, v1, 2, 2             ; r
    v_lshl_add_u32 v8, v8, 3, v9
    v_lshlrev_b32 v8, 7, v8
    v_and_b32 v9, 3, v1
    v_lshl_add_u32 v8, v9, 3, v8
    v_add_u32 v8, {stage}, v8
    v_lshlrev_b32 v9, 4, v1
    ''')
    e.force_wait(vm=0)
    for q in range(4):
        e(f'ds_read_b64_tr_b16 {v2(16 + 4 * q)}, v8 offset:{32 * q}')
        e(f'ds_read_b64_tr_b16 {v2(18 + 4 * q)}, v8 offset:{32 * q + 512}')
    for q in range(4):
        e(f's_lshl_b32 s73, s65, 2\n s_add_u32 s73, s73, {q}')
        divmod_s(e, 's74', 's75', 's73', 5)
        e(f'''
        s_mul_i32 s74, s74, s67
        s_add_u32 s74, s74, s72
        s_mul_i32 s74, s74, 5
        s_add_u32 s74, s74, s75
        s_lshl_b32 s74, s74, 10
        s_add_u32 s74, s74, s66
        buffer_store_dwordx4 {v4(16 + 4 * q)}, v9, {srd(S_WS)}, s74 offen sc1
        ''')
    e.settle()
    e(f's_branch {LD}')
    e.label(LW1A)
    e(f's_sub_u32 s73, {sU}, {U_W1A}')
    divmod_s(e, 's74', 's65', 's73', 24)
    e(f'''
    s_lshr_b32 s75, s74, 1             ; cs
    s_and_b32 s74, s74, 1              ; hf
    v_lshl_add_u32 v7, v6, 4, v5
    s_mul_i32 s64, s75, 80
    s_lshl_b32 s76, s74, 5
    s_add_u32 s64, s64, s76
    s_mov_b32 s60, 0
    s_mov_b32 s61, 4
    s_mov_b32 s62, 8
    s_mov_b32 s63, 12
    s_lshl_b32 s77, s65, 7
    s_mov_b32 s78, s77
    s_mul_i32 s72, s75, 5
    s_lshl_b32 s76, s74, 1
    s_add_u32 s72, s72, s76
    s_add_u32 s79, s72, 1              ; step(sigma=1)
    s_lshl_b32 s66, s65, 1
    s_mov_b32 s67, s66                 ; ft(sigma=1,q=0)
    s_branch {L32}
    ''')
    e.label(LW1B)
    e(f's_sub_u32 s73, {sU}, {U_W1B}')
    divmod_s(e, 's75', 's65', 's73', 12)
    e(f'''
    v_mov_b32 v7, v3                   ; jj
    s_mul_i32 s64, s75, 80
    s_add_u32 s64, s64, 64
    s_mov_b32 s60, 0
    s_mov_b32 s61, 8
    s_mov_b32 s62, 0
    s_mov_b32 s63, 8
    s_lshl_b32 s77, s65, 8
    s_add_u32 s78, s77, 128
    s_mul_i32 s72, s75, 5
    s_add_u32 s72, s72, 4
    s_mov_b32 s79, s72
    s_lshl_b32 s66, s65, 2
    s_add_u32 s67, s66, 2
    s_branch {L32}
    ''')
    e.label(L32)
    e(f'''
    v_mul_u32_u24 v7, 3072, v7
    v_lshl_add_u32 v7, v4, 4, v7
    ''')
    for u in range(4):
        col = 's77' if u < 2 else 's78'
        e(f'''
        s_add_u32 s74, s64, s{60 + u}
        s_mul_i32 s74, s74, 3072
        s_add_u32 s74, s74, {col}
        s_add_u32 s75, {stage}, {1024 * u}
        s_mov_b32 m0, s75
        buffer_load_dwordx4 v7, {srd(S_W1)}, s74 offen lds
        ''')
    e(f'''
    v_lshrrev_b32 v8, 5, v1            ; h
    v_bfe_u32 v9, v1, 2, 2             ; r
    v_lshl_add_u32 v8, v8, 3, v9
    v_lshlrev_b32 v8, 7, v8
    v_bfe_u32 v9, v1, 4, 1             ; nhalf
    v_lshl_add_u32 v8, v9, 5, v8
    v_and_b32 v9, 3, v1
    v_lshl_add_u32 v8, v9, 3, v8
    v_add_u32 v8, {stage}, v8
    v_lshlrev_b32 v9, 4, v1
    ''')
    e.force_wait(vm=0)
    for sg in range(2):
        for q in range(2):
            k = 2 * sg + q
            e(f'ds_read_b64_tr_b16 {v2(16 + 4 * k)}, v8 offset:{2048 * sg + 64 * q}')
            e(f'ds_read_b64_tr_b16 {v2(18 + 4 * k)}, v8 offset:{2048 * sg + 64 * q + 512}')
    for sg in range(2):
        for q in range(2):
            k = 2 * sg + q
            ft = 's66' if sg == 0 else 's67'
            st = 's72' if sg == 0 else 's79'
            e(f'''
            s_add_u32 s74, {ft}, {q}
            s_mul_i32 s74, s74, 40
            s_add_u32 s74, s74, {st}
            s_lshl_b32 s74, s74, 10
            s_add_u32 s74, s74, {WS_W1F}
            buffer_store_dwordx4 {v4(16 + 4 * k)}, v9, {srd(S_WS)}, s74 offen sc1
            ''')
    e.settle()
    e.label(LD)
    e.assume_settled()


def relayout(e, stage_base):
    e(f'''
    s_lshl_b32 s98, {sB}, 2
    s_add_u32 s98, s98, {sW}
    s_lshl_b32 s99, {sW}, 12
    s_add_u32 s99, s99, {stage_base}
    ''')
    e.settle()
    relayout_unit(e, 's98', 's99')
    skip = e.new_label('RLSKIP')
    e(f'''
    s_add_u32 s98, s98, 1024
    s_cmp_ge_u32 s98, {U_END}
    s_cbranch_scc1 {skip}
    ''')
    relayout_unit(e, 's98', 's99')
    e.label(skip)
    e.assume_settled()


def publish_flag(e, base, idx_sgpr):
    lbl = e.new_label('PF')
    e(f'''
    s_lshl_b32 s57, {idx_sgpr}, 7
    s_add_u32 s57, s57, {base}
    v_mov_b32 v3, {sTAG}
    v_mov_b32 v4, 0
    s_cmp_lg_u32 {sW}, 0
    s_cbranch_scc1 {lbl}
    s_mov_b64 exec, 1
    ''')
    e.raw(f'buffer_store_dword v3, v4, {srd(S_WS)}, s57 offen sc1')
    e.raw('s_nop 1')
    e('s_mov_b64 exec, -1')
    e.label(lbl)


SPIN_MAX = 400000


def poll_flags(e, voff, nregs=1):
    lp = e.new_label('POLL')
    dn = e.new_label('POLLD')
    e.settle()
    e(f'''
    s_cmp_lg_u32 {sW}, 0
    s_cbranch_scc1 {dn}
    s_mov_b32 s57, 0
    ''')
    e.label(lp)
    for k in range(nregs):
        e(f'buffer_load_dword v{voff + nregs + k}, v{voff + k}, {srd(S_WS)}, 0 offen sc1', nowait=True)
    e.force_wait(vm=0)
    e(f'v_cmp_ne_u32 vcc, {sTAG}, v{voff + nregs}', nowait=True)
    for k in range(1, nregs):
        e(f'v_cmp_ne_u32 s[58:59], {sTAG}, v{voff + nregs + k}', nowait=True)
        e('s_or_b64 vcc, vcc, s[58:59]', nowait=True)
    e(f'''
    s_add_u32 s57, s57, 1
    s_cmp_gt_u32 s57, {SPIN_MAX}
    s_cbranch_scc1 {dn}
    s_cbranch_vccnz {lp}
    ''', nowait=True)
    e.label(dn)
    e.assume_settled()
    e('s_barrier')
```

```python
from common import *
from p0 import hexf, LOG2E, LDS_MISC, publish_flag, poll_flags

NSLOT = 9
MV = LDS_MISC
QSCALE = LOG2E / (20 ** 0.5)


def p1_dma_addr(e, vreg):
    e(f'''
    v_lshrrev_b32 v3, 4, v1
    v_lshlrev_b32 v4, 2, v3
    v_sub_u32 v4, v1, v4
    v_and_b32 v4, 15, v4
    v_mul_u32_u24 v{vreg}, 3840, v3
    v_lshl_add_u32 v{vreg}, v4, 4, v{vreg}
    ''')


def p1_dma_chunk(e, vreg, chunk, slot, sCol):
    for u in range(4):
        e(f'''
        s_add_u32 s57, {sCol}, {(64 * chunk + 4 * u) * 3840}
        s_add_u32 s58, s61, {slot * 16384 + u * 1024}
        s_mov_b32 m0, s58
        buffer_load_dwordx4 v{vreg}, {srd(S_WQKV)}, s57 offen lds
        ''')


def p1_prefetch_setup(e):
    e(f'''
    s_min_u32 s59, {sJ}, 14
    s_lshl_b32 s59, s59, 8
    s_mul_i32 s60, {sW}, {16 * 3840}
    s_add_u32 s60, s60, s59
    s_lshl_b32 s61, {sW}, 12
    ''')


def load_mod_vectors(e, col0, nquads, lds_base, add_one_from):
    rounds = (nquads + 255) // 256
    for rd in range(rounds):
        R = 200 + 0
        e(f'''
        v_add_u32 v3, {256 * rd}, v0
        v_lshlrev_b32 v4, 4, v3
        ''')
        for p in range(4):
            e(f's_mov_b32 s57, {WS_MODP + p * 15360 + col0 * 4}')
            e(f'buffer_load_dwordx4 {v4(R + 4 * p)}, v4, {srd(S_WS)}, s57 offen sc1')
        e(f'''
        v_cmp_le_u32 vcc, {add_one_from}, v3
        v_cndmask_b32 v5, 0, 1.0, vcc
        ''')
        for h in range(2):
            e(f'v_pk_add_f32 {v2(R + 2 * h)}, {v2(R + 2 * h)}, {v2(R + 4 + 2 * h)}')
            e(f'v_pk_add_f32 {v2(R + 8 + 2 * h)}, {v2(R + 8 + 2 * h)}, {v2(R + 12 + 2 * h)}')
        for h in range(2):
            e(f'v_pk_add_f32 {v2(R + 2 * h)}, {v2(R + 2 * h)}, {v2(R + 8 + 2 * h)}')
        for h in range(2):
            e(f'v_cvt_pk_bf16_f32 v{R + 4 + h}, v{R + 2 * h}, v{R + 2 * h + 1}')
        for h in range(2):
            e(f'v_lshlrev_b32 v{R + 2 * h}, 16, v{R + 4 + h}')
            e(f'v_and_b32 v{R + 2 * h + 1}, 0xffff0000, v{R + 4 + h}')
        for k in range(4):
            e(f'v_add_f32 v{R + k}, v5, v{R + k}')
        for h in range(2):
            e(f'v_cvt_pk_bf16_f32 v{R + 4 + h}, v{R + 2 * h}, v{R + 2 * h + 1}')
        for h in range(2):
            e(f'v_lshlrev_b32 v{R + 2 * h}, 16, v{R + 4 + h}')
            e(f'v_and_b32 v{R + 2 * h + 1}, 0xffff0000, v{R + 4 + h}')
        e(f'v_add_u32 v4, {lds_base}, v4')
        if (rd + 1) * 256 > nquads:
            e(f'''
            v_cmp_gt_u32 vcc, {nquads}, v3
            s_and_saveexec_b64 s[58:59], vcc
            ''')
            lbl = e.new_label('MVS')
            e(f's_cbranch_execz {lbl}')
            e.raw(f'ds_write_b128 v4, {v4(R)}')
            e.label(lbl)
            e('s_mov_b64 exec, s[58:59]')
            e.force_wait(lg=0)
        else:
            e(f'ds_write_b128 v4, {v4(R)}')


def p1_main(e):
    XB = 16
    WA = [176, 192]
    GS = [208, 224]
    T = 240
    ACC = 64
    vTA = [244, 245, 246, 247]
    vG = 248
    skip = e.new_label('P1SKIP')
    load_mod_vectors(e, 0, 320, MV, 160)
    e(f'''
    s_lshl_b32 s57, {sI}, 2
    s_add_u32 s57, s57, {sW}
    s_mul_i32 s57, s57, 40960
    s_add_u32 s57, s57, {WS_XN}
    v_lshlrev_b32 v2, 4, v1
    ''')
    for s in range(40):
        if s and s % 4 == 0:
            e('s_add_u32 s57, s57, 4096')
        e(f'buffer_load_dwordx4 {v4(XB + 4 * s)}, v2, {srd(S_WS)}, s57 offen offset:{(s % 4) * 1024} sc1')
    first_xn = e.vm_n - 40
    e(f'''
    v_lshrrev_b32 v3, 5, v1            ; h
    v_bfe_u32 v4, v1, 2, 2             ; r
    v_lshl_add_u32 v5, v3, 3, v4       ; 8h + r
    v_lshlrev_b32 v5, 8, v5            ; row*256
    v_and_b32 v6, 1, v1
    v_lshl_add_u32 v5, v6, 3, v5       ; + sub*8
    v_bfe_u32 v6, v1, 4, 1             ; nhalf
    v_bfe_u32 v7, v1, 1, 1             ; cpiece>>1
    v_lshl_add_u32 v6, v6, 1, v7
    v_lshl_add_u32 v6, v4, 2, v6
    ''')
    for tau in range(4):
        e(f'''
        v_add_u32 v7, {4 * tau}, v6
        v_and_b32 v7, 15, v7
        v_lshl_add_u32 v{vTA[tau]}, v7, 4, v5
        ''')
    e(f'''
    v_lshlrev_b32 v{vG}, 5, v3
    v_add_u32 v{vG}, {MV}, v{vG}
    ''')
    e.wait_vm_tok(first_xn - 1)
    e.wait(lg=0)
    e('s_barrier')

    def tr_reads(s):
        out = []
        q, sl = s >> 2, s & 3
        slot = q % NSLOT
        for tau in range(4):
            for ee in range(2):
                off = (slot * 16384) % 65536 + (16 * sl + 4 * ee) * 256
                out.append(f'ds_read_b64_tr_b16 {v2(WA[s & 1] + 4 * tau + 2 * ee)}, v{vTA[tau]} offset:{off}')
        return out

    def addr_fix(s):
        q = s >> 2
        if s & 3 or s == 0:
            return []
        slot, prev = q % NSLOT, (q - 1) % NSLOT
        d = (slot * 16384) // 65536 - (prev * 16384) // 65536
        if d == 0:
            return []
        return [f'v_add_u32 v{vTA[t]}, {hex((d * 65536) & 0xffffffff)}, v{vTA[t]}' for t in range(4)]

    def gs_reads(s):
        b = GS[s & 1]
        return [f'ds_read_b128 {v4(b)}, v{vG} offset:{2560 + 64 * s}',
                f'ds_read_b128 {v4(b + 4)}, v{vG} offset:{2560 + 64 * s + 16}',
                f'ds_read_b128 {v4(b + 8)}, v{vG} offset:{64 * s}',
                f'ds_read_b128 {v4(b + 12)}, v{vG} offset:{64 * s + 16}']

    def modulate(s):
        b = GS[s & 1]
        out = []
        for d in range(4):
            x = XB + 4 * s + d
            t = T + 2 * (d & 1)
            out.append(f'v_fma_mix_f32 v{t}, v{x}, v{b + 2 * d}, v{b + 8 + 2 * d} op_sel:[0,0,0] op_sel_hi:[1,0,0]')
            out.append(f'v_fma_mix_f32 v{t + 1}, v{x}, v{b + 2 * d + 1}, v{b + 8 + 2 * d + 1} op_sel:[1,0,0] op_sel_hi:[1,0,0]')
            out.append(f'v_cvt_pk_bf16_f32 v{x}, v{t}, v{t + 1}')
        return out

    for x in gs_reads(0):
        e(x)
    for x in tr_reads(0):
        e(x)
    for x in gs_reads(1):
        e(x)
    for x in modulate(0):
        e(x)
    for s in range(40):
        fill = []
        if s + 1 < 40:
            fill += addr_fix(s + 1) + tr_reads(s + 1)
        mod = modulate(s + 1) if s + 1 < 40 else []
        gs = gs_reads(s + 2) if s + 2 < 40 else []
        seq = fill + mod + gs
        per = (len(seq) + 3) // 4
        for tau in range(4):
            c = '0' if s == 0 else ar(ACC + 16 * tau, 16)
            e(f'v_mfma_f32_32x32x16_bf16 {ar(ACC + 16 * tau, 16)}, {v4(WA[s & 1] + 4 * tau)}, {v4(XB + 4 * s)}, {c}')
            for x in seq[tau * per:(tau + 1) * per]:
                e(x)
        if s == 3:
            e.wait(lg=0)
            e('s_barrier')
            p1_dma_chunk(e, 249, 9, 0, 's60')
            tok9 = e.vm_token()
        if s == 34:
            e.wait_vm_tok(tok9)
            e('s_barrier')
    e(f'''
    s_cmp_lt_u32 {sJ}, 5
    s_cselect_b32 s58, {hexf(QSCALE)}, 1.0
    s_mov_b32 s59, s58
    s_lshl_b32 s57, {sJ}, 19           ; quad m0 = 8c ; *65536
    s_lshl_b32 s62, {sI}, 7
    s_lshl_b32 s63, {sW}, 5
    s_add_u32 s62, s62, s63
    s_lshl_b32 s62, s62, 4
    s_add_u32 s57, s57, s62
    s_add_u32 s57, s57, {WS_QKV}
    v_lshrrev_b32 v3, 5, v1
    v_lshlrev_b32 v3, 15, v3
    v_and_b32 v4, 31, v1
    v_lshl_add_u32 v3, v4, 4, v3
    s_cmp_ge_u32 {sJ}, 15
    s_cbranch_scc1 {skip}
    ''')
    for tau in range(4):
        for e2 in range(2):
            R = 16 + 16 * (2 * tau + e2)
            for k in range(8):
                e(f'v_accvgpr_read_b32 v{R + k}, a{ACC + 16 * tau + 8 * e2 + k}')
            for k in range(4):
                e(f'v_pk_mul_f32 {v2(R + 2 * k)}, {v2(R + 2 * k)}, s[58:59]')
            for k in range(4):
                e(f'v_cvt_pk_bf16_f32 v{R + 8 + k}, v{R + 2 * k}, v{R + 2 * k + 1}')
            e(f'buffer_store_dwordx4 {v4(R + 8)}, v3, {srd(S_WS)}, s57 offen sc1')
            e('s_add_u32 s57, s57, 65536')
    e.settle()
    e.label(skip)
    e.assume_settled()
    e('s_barrier')
    e(f's_lshl_b32 s62, {sI}, 4\n s_add_u32 s62, s62, {sJ}')
    publish_flag(e, FL_QKV, 's62')
```

```python
from common import *
from p0 import hexf, publish_flag, poll_flags

KB = 0
KS = 6144
VB = 36864
VS = 6208
OB = VB + 6 * VS + 64
NEG = -1.0e30

SB = 16
QF = 160
QM = 172
KF = 188
VF = 204
MK = 220
OA = 228
vK, vVA, vVB, vY = 244, 245, 246, 247
vM, vT0, vT1, vT2 = 248, 249, 250, 251
OUTA = 0


def p2_setup_and_sync(e):
    e(f'''
    s_mul_i32 s60, {sJ}, 5
    s_lshr_b32 s60, s60, 1             ; m0
    s_and_b32 s61, {sJ}, 1
    s_lshl_b32 s61, s61, 1             ; o
    s_lshr_b32 s62, s60, 3             ; c_lo
    s_add_u32 s63, s60, 2
    s_lshr_b32 s63, s63, 3             ; c_hi
    ''')
    e(f'''
    v_and_b32 v3, 15, v1
    v_lshrrev_b32 v4, 2, v3
    v_and_b32 v5, 1, v3
    v_mov_b32 v6, s62
    v_mov_b32 v7, s63
    v_cmp_eq_u32 vcc, 1, v5
    v_cndmask_b32 v6, v6, v7, vcc
    v_bfe_u32 v5, v3, 1, 1
    v_mul_u32_u24 v5, 5, v5
    v_add_u32 v5, 5, v5                ; 5 or 10
    v_cmp_eq_u32 vcc, 3, v4
    v_cndmask_b32 v5, v5, 0, vcc
    v_cndmask_b32 v4, v4, 0, vcc
    v_add_u32 v6, v6, v5               ; tile
    v_sub_u32 v7, {sI}, v4
    v_max_i32 v7, 0, v7
    v_lshl_add_u32 v7, v7, 4, v6
    v_lshlrev_b32 v8, 7, v7
    v_add_u32 v8, {FL_QKV}, v8
    ''')
    poll_flags(e, 8, 1)


def p2_loads(e):
    e(f'''
    v_mov_b32 v8, 0x3f80
    v_mov_b32 v9, 0
    v_mov_b32 v10, 0
    v_mov_b32 v11, 0
    v_lshlrev_b32 v3, 4, v0
    v_add_u32 v3, {OB}, v3
    ds_write_b128 v3, v[8:11]
    v_and_b32 v4, 127, v0
    v_lshlrev_b32 v4, 4, v4
    v_add_u32 v4, {OB + 4096}, v4
    ds_write_b128 v4, v[8:11]
    ''')
    e(f'''
    s_lshl_b32 s57, {sI}, 7
    s_lshl_b32 s58, {sW}, 5
    s_add_u32 s57, s57, s58
    s_lshl_b32 s57, s57, 4
    s_lshl_b32 s58, s60, 16
    s_add_u32 s57, s57, s58
    s_add_u32 s57, s57, {WS_QKV}
    v_lshrrev_b32 v3, 5, v1            ; h
    v_and_b32 v4, 31, v1               ; t
    v_lshlrev_b32 v5, 15, v3
    v_lshl_add_u32 v5, v4, 4, v5
    ''')
    for f in range(3):
        e(f'buffer_load_dwordx4 {v4(QF + 4 * f)}, v5, {srd(S_WS)}, s57 offen sc1')
        if f < 2:
            e('s_add_u32 s57, s57, 65536')
    for ri in range(3):
        e(f'''
        s_add_u32 s57, {sI}, {ri}
        s_cmp_ge_u32 s57, 2
        s_cselect_b32 s58, 0, 0xf0000000
        v_lshlrev_b32 v{12 + ri}, 4, v1
        v_or_b32 v{12 + ri}, s58, v{12 + ri}
        ''')
    for n in range(3):
        e(f'''
        s_mul_i32 s57, {sW}, 3
        s_add_u32 s57, s57, {n}         ; combo
        s_cmp_ge_u32 s57, 6
        s_cselect_b32 s58, 1, 0         ; sec
        s_mul_i32 s59, s58, 6
        s_sub_u32 s59, s57, s59         ; row
        s_mul_i32 s62, s58, 40
        s_add_u32 s62, s62, 40
        s_add_u32 s62, s62, s60
        s_lshl_b32 s62, s62, 1
        s_add_u32 s62, s62, s59
        s_lshl_b32 s62, s62, 15         ; *32768
        s_lshl_b32 s63, {sI}, 11        ; 128*i*16
        s_add_u32 s62, s62, s63
        s_add_u32 s62, s62, {WS_QKV - 4096}
        s_mul_i32 s63, s59, {KS}
        s_mul_i32 s96, s59, {VS}
        s_add_u32 s96, s96, {VB}
        s_cmp_eq_u32 s58, 1
        s_cselect_b32 s63, s96, s63
        ''')
        for ri in range(3):
            for hf in range(2):
                e(f'''
                s_add_u32 s57, s62, {ri * 2048 + hf * 1024}
                s_add_u32 s58, s63, {ri * 2048 + hf * 1024}
                s_mov_b32 m0, s58
                buffer_load_dwordx4 v{12 + ri}, {srd(S_WS)}, s57 offen sc1 lds
                ''')


def p2_lane_setup(e):
    e(f'''
    v_lshrrev_b32 v3, 5, v1
    v_and_b32 v4, 31, v1
    s_lshl_b32 s57, {sW}, 5
    v_mul_u32_u24 v5, {KS}, v3
    v_add_u32 v6, s57, v4
    v_lshl_add_u32 v{vK}, v6, 4, v5
    v_add_u32 v{vK}, {KB}, v{vK}
    v_lshlrev_b32 v5, 2, v3
    v_sub_u32 v{vY}, v4, v5            ; t_q - 4h
    ''')
    for r in range(16):
        c = (r & 3) + 8 * (r >> 2)
        e(f'v_cmp_le_i32 s[{64 + 2 * r}:{65 + 2 * r}], {c}, v{vY}')
    for d in range(8):
        e(f'''
        v_mov_b32 v8, 0xffff
        v_mov_b32 v9, 0xffff0000
        v_cndmask_b32 v8, 0, v8, s[{64 + 4 * d}:{65 + 4 * d}]
        v_cndmask_b32 v9, 0, v9, s[{66 + 4 * d}:{67 + 4 * d}]
        v_or_b32 v{MK + d}, v8, v9
        ''')
    e(f'''
    v_bfe_u32 v5, v1, 2, 2             ; r
    v_lshl_add_u32 v5, v3, 2, v5       ; 4h + r
    v_add_u32 v5, s57, v5              ; + 32w
    v_lshlrev_b32 v5, 4, v5            ; key*16
    v_bfe_u32 v6, v1, 4, 1
    v_and_b32 v7, 3, v1
    v_lshl_add_u32 v6, v6, 2, v7       ; pp
    ''')
    for X, reg in ((0, vVA), (1, vVB)):
        e(f'''
        v_add_u32 v7, s61, v6
        v_add_u32 v7, {5 * X}, v7       ; p
        v_lshrrev_b32 v8, 2, v7
        v_lshlrev_b32 v8, 1, v8
        v_and_b32 v9, 1, v7
        v_add_u32 v8, v8, v9            ; row
        v_mul_u32_u24 v8, {VS}, v8
        v_bfe_u32 v9, v7, 1, 1
        v_lshl_add_u32 v8, v9, 3, v8
        v_add_u32 v8, {VB}, v8
        v_bfe_u32 v9, v6, 1, 1
        v_lshlrev_b32 v9, 3, v9
        v_add_u32 v9, {OB}, v9
        v_cmp_le_u32 vcc, 5, v6
        v_cndmask_b32 v8, v8, v9, vcc
        v_add_u32 v{reg}, v8, v5
        ''')
    e(f'v_subrev_u32 v5, s61, v3')
    for idx, (f, X) in enumerate(((0, 0), (1, 0), (1, 1), (2, 1))):
        for hi in range(2):
            e(f'''
            v_add_u32 v6, {(4 * f + 2 * hi - 5 * X) & 0xffffffff}, v5
            v_cmp_gt_u32 vcc, 5, v6
            v_cndmask_b32 v{QM + 4 * idx + 2 * hi}, 0, v{QF + 4 * f + 2 * hi}, vcc
            v_cndmask_b32 v{QM + 4 * idx + 2 * hi + 1}, 0, v{QF + 4 * f + 2 * hi + 1}, vcc
            ''')


def head(e, X):
    vV = vVA if X == 0 else vVB
    Qa, Qb = QM + 8 * X, QM + 8 * X + 4

    def kreads(jb):
        b = KF + 8 * (jb & 1)
        return [f'ds_read_b128 {v4(b)}, v{vK} offset:{2 * X * KS + jb * 512}',
                f'ds_read_b128 {v4(b + 4)}, v{vK} offset:{2 * (X + 1) * KS + jb * 512}']
    for x in kreads(0):
        e(x)
    for jb in range(9):
        if jb + 1 < 9:
            for x in kreads(jb + 1):
                e(x)
        b = KF + 8 * (jb & 1)
        S = vr(SB + 16 * jb, 16)
        e(f'v_mfma_f32_32x32x16_bf16 {S}, {v4(b)}, {v4(Qa)}, 0')
        e(f'v_mfma_f32_32x32x16_bf16 {S}, {v4(b + 4)}, {v4(Qb)}, {S}')
    e(f'''
    s_lshl_b32 s57, {sI}, 2
    s_add_u32 s57, s57, {sW}           ; qb
    s_sub_i32 s58, 8, s57
    ''')
    done = e.new_label('FIXD')
    e('s_nop 7\n s_nop 3')
    for jb in range(8):
        e(f's_cmp_gt_i32 s58, {jb}\n s_cbranch_scc0 {done}')
        for r in range(16):
            e(f'v_mov_b32 v{SB + 16 * jb + r}, {hexf(NEG)}')
    e.label(done)
    M = SB + 128
    for r in range(16):
        e(f'v_cndmask_b32 v{M + r}, v{SB + r}, v{M + r}, s[{64 + 2 * r}:{65 + 2 * r}]')
    regs = list(range(SB + 16, SB + 144))
    e(f'v_max3_f32 v{vM}, v{regs[0]}, v{regs[1]}, v{regs[2]}')
    e(f'v_max3_f32 v{vT0}, v{regs[3]}, v{regs[4]}, v{regs[5]}')
    k = 6
    tog = 0
    while k + 1 < len(regs):
        d = vM if tog == 0 else vT0
        e(f'v_max3_f32 v{d}, v{regs[k]}, v{regs[k + 1]}, v{d}')
        k += 2
        tog ^= 1
    assert k == len(regs)
    e(f'v_max_f32 v{vM}, v{vM}, v{vT0}')
    e(f'v_mov_b32 v{vT0}, v{vM}')
    e(f'v_permlane32_swap_b32 v{vM}, v{vT0}')
    e(f'v_max_f32 v{vM}, v{vM}, v{vT0}')

    def probs(base):
        out = []
        for k in range(8):
            out.append(f'v_pk_add_f32 {v2(base + 2 * k)}, {v2(base + 2 * k)}, {v2(vM)} op_sel_hi:[1,0] neg_lo:[0,1] neg_hi:[0,1]')
        for k in range(16):
            out.append(f'v_exp_f32 v{base + k}, v{base + k}')
        for k in range(8):
            out.append(f'v_cvt_pk_bf16_f32 v{base + k}, v{base + 2 * k}, v{base + 2 * k + 1}')
        return out
    order = [1, 2, 3, 4, 5, 6, 7, 8, 0]
    O = vr(OA, 16)
    first = True
    bufidx = {jb: n & 1 for n, jb in enumerate(order)}

    def vreads2(jb):
        b = VF + 8 * bufidx[jb]
        return [f'ds_read_b64_tr_b16 {v2(b + 4 * sg + 2 * ee)}, v{vV} offset:{jb * 512 + sg * 256 + ee * 128}'
                for sg in range(2) for ee in range(2)]
    for x in vreads2(order[0]):
        e(x)
    for n, jb in enumerate(order):
        if n + 1 < len(order):
            for x in vreads2(order[n + 1]):
                e(x)
        base = SB + 16 * jb
        if jb == 8:
            for x in probs(base):
                e(x)
            for d in range(8):
                e(f'v_bfi_b32 v{SB + d}, v{MK + d}, 0, v{base + d}')
            for d in range(8):
                e(f'v_and_b32 v{base + d}, v{MK + d}, v{base + d}')
        elif jb != 0:
            for x in probs(base):
                e(x)
        b = VF + 8 * bufidx[jb]
        for sg in range(2):
            c = '0' if first else O
            first = False
            e(f'v_mfma_f32_32x32x16_bf16 {O}, {v4(b + 4 * sg)}, {v4(base + 4 * sg)}, {c}')
    e(f'v_mov_b32 v{vT0}, v{OA + 8}')
    e(f'v_mov_b32 v{vT1}, v{OA + 8}')
    e(f'v_permlane32_swap_b32 v{vT0}, v{vT1}')
    e(f'v_rcp_f32 v{vT1}, v{vT1}')
    for k in range(6):
        e(f'v_pk_mul_f32 {v2(OA + 2 * k)}, {v2(OA + 2 * k)}, {v2(vT1)} op_sel_hi:[1,0]')


def p2_all(e):
    p2_setup_and_sync(e)
    p2_loads(e)
    p2_lane_setup(e)
    e.settle()
    e('s_barrier')
    e(f'''
    s_lshl_b32 s62, {sI}, 3
    s_lshl_b32 s63, {sW}, 1
    s_add_u32 s62, s62, s63
    s_mul_i32 s62, s62, 20480
    s_add_u32 s62, s62, {WS_OF}
    s_lshl_b32 s63, {sJ}, 10
    s_add_u32 s96, s62, s63
    s_lshr_b32 s63, {sJ}, 2
    s_add_u32 s63, s63, 16
    s_lshl_b32 s63, s63, 10
    s_add_u32 s97, s62, s63
    s_and_b32 s63, {sJ}, 3
    s_lshl_b32 s63, s63, 8
    s_add_u32 s97, s97, s63
    v_bfe_u32 v3, v1, 4, 1
    v_mul_u32_u24 v3, 20480, v3
    v_and_b32 v4, 15, v1
    v_lshl_add_u32 v3, v4, 4, v3
    v_lshrrev_b32 v4, 5, v1
    v_lshl_add_u32 v2, v4, 8, v3       ; main: + h*256
    v_mov_b32 v5, 0xf0000000
    v_cmp_eq_u32 vcc, 0, v4
    v_cndmask_b32 v3, v5, v3, vcc
    ''')
    for X in range(2):
        head(e, X)
        for k in range(4):
            e(f'v_cvt_pk_bf16_f32 v{8 + k}, v{OA + 2 * k}, v{OA + 2 * k + 1}')
        e(f'v_cvt_pk_bf16_f32 v{12 + 2 * X}, v{OA + 8}, v{OA + 9}')
        e(f'v_cvt_pk_bf16_f32 v{13 + 2 * X}, v{OA + 10}, v{OA + 11}')
        e(f'buffer_store_dwordx4 v[8:11], v2, {srd(S_WS)}, s96 offen offset:{512 * X} sc1')
    e(f'buffer_store_dwordx4 v[12:15], v3, {srd(S_WS)}, s97 offen sc1')
    e.settle()
    e('s_barrier')
    e(f's_lshl_b32 s62, {sI}, 4\n s_add_u32 s62, s62, {sJ}')
    publish_flag(e, FL_O, 's62')
```

```python
from common import *
from p0 import hexf, LOG2E, LDS_MISC, publish_flag, poll_flags, dpp_rowsum

M2 = LDS_MISC
M2_GA, M2_SB, M2_G2, M2_GB = M2, M2 + 2560, M2 + 5120, M2 + 7680
VEC = M2 + 10240
UVT = VEC + 3840
RS = UVT + 1536
assert RS + 768 <= LDS_SIZE
RED = 0
RSB = 126976
X1P = 230


def load_mod2(e):
    R = 200
    for rd in range(3):
        e(f'''
        v_add_u32 v3, {256 * rd}, v0
        v_lshlrev_b32 v4, 4, v3
        ''')
        for p in range(4):
            e(f's_mov_b32 s57, {WS_MODP + p * 15360 + 1280 * 4}')
            e(f'buffer_load_dwordx4 {v4(R + 4 * p)}, v4, {srd(S_WS)}, s57 offen sc1')
        e(f'''
        v_subrev_u32 v5, 320, v3
        v_cmp_gt_u32 vcc, 160, v5
        v_cndmask_b32 v5, 0, 1.0, vcc
        ''')
        for h in range(2):
            e(f'v_pk_add_f32 {v2(R + 2 * h)}, {v2(R + 2 * h)}, {v2(R + 4 + 2 * h)}')
            e(f'v_pk_add_f32 {v2(R + 8 + 2 * h)}, {v2(R + 8 + 2 * h)}, {v2(R + 12 + 2 * h)}')
        for h in range(2):
            e(f'v_pk_add_f32 {v2(R + 2 * h)}, {v2(R + 2 * h)}, {v2(R + 8 + 2 * h)}')
        for rep in range(2):
            for h in range(2):
                e(f'v_cvt_pk_bf16_f32 v{R + 4 + h}, v{R + 2 * h}, v{R + 2 * h + 1}')
            for h in range(2):
                e(f'v_lshlrev_b32 v{R + 2 * h}, 16, v{R + 4 + h}')
                e(f'v_and_b32 v{R + 2 * h + 1}, 0xffff0000, v{R + 4 + h}')
            if rep == 0:
                for k in range(4):
                    e(f'v_add_f32 v{R + k}, v5, v{R + k}')
        e(f'v_add_u32 v4, {M2}, v4')
        if rd == 2:
            lbl = e.new_label('M2S')
            e(f'''
            v_cmp_gt_u32 vcc, 640, v3
            s_and_saveexec_b64 s[58:59], vcc
            s_cbranch_execz {lbl}
            ''')
            e.raw(f'ds_write_b128 v4, {v4(R)}')
            e.label(lbl)
            e('s_mov_b64 exec, s[58:59]')
            e.force_wait(lg=0)
        else:
            e(f'ds_write_b128 v4, {v4(R)}')


def poll_group(e, base):
    e(f'''
    v_and_b32 v8, 15, v1
    s_lshl_b32 s57, {sI}, 4
    v_add_u32 v8, s57, v8
    v_lshlrev_b32 v8, 7, v8
    v_add_u32 v8, {base}, v8
    ''')
    poll_flags(e, 8, 1)


def ksplit_setup(e):
    e(f'''
    s_lshr_b32 s60, {sJ}, 3
    s_and_b32 s61, {sJ}, 7
    s_lshl_b32 s62, {sI}, 3
    s_lshl_b32 s63, s60, 2
    s_add_u32 s62, s62, s63
    ''')


def load_wfrags(e, ws_base, nS_total, nS):
    e(f'''
    s_mul_i32 s57, s61, {nS_total}
    s_mul_i32 s58, {sW}, {nS}
    s_add_u32 s57, s57, s58
    s_mul_i32 s57, s57, 5120
    s_add_u32 s57, s57, {ws_base}
    v_lshlrev_b32 v2, 4, v1
    ''')
    for k in range(nS * 5):
        if k and k % 4 == 0:
            e('s_add_u32 s57, s57, 4096')
        e(f'buffer_load_dwordx4 {a4(4 * k)}, v2, {srd(S_WS)}, s57 offen offset:{(k % 4) * 1024} sc1')


def act_bases(e, ws_base, nS_total, nS, sregs):
    for tau in range(4):
        e(f'''
        s_add_u32 s57, {sW}, {tau}
        s_and_b32 s57, s57, 3
        s_add_u32 s57, s57, s62
        s_mul_i32 s57, s57, {nS_total}
        s_mul_i32 s58, {sW}, {nS}
        s_add_u32 s57, s57, s58
        s_lshl_b32 s57, s57, 10
        s_add_u32 {sregs[tau]}, s57, {ws_base}
        ''')


def reduce4(e, ACC):
    e(f'''
    v_lshlrev_b32 v3, 4, v1
    s_mul_i32 s57, {sW}, 15360
    v_add_u32 v4, s57, v3
    v_add_u32 v4, {RED}, v4
    ''')
    for tau in range(1, 4):
        e(f'''
        s_add_u32 s57, {sW}, {tau}
        s_and_b32 s57, s57, 3
        s_mul_i32 s57, s57, 15360
        s_add_u32 s57, s57, {RED + (tau - 1) * 5120}
        v_add_u32 v5, s57, v3
        ''')
        for a in range(5):
            e(f'ds_write_b128 v5, {v4(ACC + (5 * tau + a) * 4)} offset:{a * 1024}')
    e.wait(lg=0)
    e('s_barrier')
    T = ACC + 20
    for sl in range(3):
        for a in range(5):
            e(f'ds_read_b128 {v4(T + (5 * sl + a) * 4)}, v4 offset:{sl * 5120 + a * 1024}')
    for a in range(5):
        for h in range(2):
            r = ACC + 4 * a + 2 * h
            e(f'v_pk_add_f32 {v2(T + 4 * a + 2 * h)}, {v2(T + 4 * a + 2 * h)}, {v2(T + 20 + 4 * a + 2 * h)}')
            e(f'v_pk_add_f32 {v2(r)}, {v2(r)}, {v2(T + 40 + 4 * a + 2 * h)}')
            e(f'v_pk_add_f32 {v2(r)}, {v2(r)}, {v2(T + 4 * a + 2 * h)}')


def lane_vec_reads(e, dst, lds_base):
    for a in range(5):
        e(f'ds_read_b128 {v4(dst + 4 * a)}, v6 offset:{lds_base - M2 + 64 * a}')


def p3(e):
    ksplit_setup(e)
    load_wfrags(e, WS_WOF, 20, 5)
    load_mod2(e)
    e(f'''
    s_add_u32 s57, s62, {sW}
    s_lshl_b32 s57, s57, 4
    s_mul_i32 s63, s57, 1280
    s_mul_i32 s58, s61, 160
    s_add_u32 s63, s63, s58
    v_and_b32 v3, 15, v1
    v_lshrrev_b32 v4, 4, v1
    v_mul_u32_u24 v7, 1280, v3
    v_lshl_add_u32 v7, v4, 3, v7
    ''')
    XT = 180
    for a in range(5):
        e(f'buffer_load_dwordx2 {v2(XT + 2 * a)}, v7, {srd(S_X)}, s63 offen offset:{32 * a}')
    poll_group(e, FL_O)
    sr = ['s96', 's97', 's98', 's99']
    act_bases(e, WS_OF, 20, 5, sr)
    BF, ACC = 16, 96
    e('v_lshlrev_b32 v2, 4, v1')
    for s in range(5):
        for tau in range(4):
            off = s * 1024
            if off < 4096:
                e(f'buffer_load_dwordx4 {v4(BF + (5 * tau + s) * 4)}, v2, {srd(S_WS)}, {sr[tau]} offen offset:{off} sc1')
            else:
                e(f's_add_u32 s57, {sr[tau]}, 4096')
                e(f'buffer_load_dwordx4 {v4(BF + (5 * tau + s) * 4)}, v2, {srd(S_WS)}, s57 offen sc1')
    for s in range(5):
        for tau in range(4):
            for a in range(5):
                r = v4(ACC + (5 * tau + a) * 4)
                c = '0' if s == 0 else r
                e(f'v_mfma_f32_16x16x32_bf16 {r}, {a4((5 * s + a) * 4)}, {v4(BF + (5 * tau + s) * 4)}, {c}')
    reduce4(e, ACC)
    e(f'''
    v_lshrrev_b32 v4, 4, v1            ; g
    s_mul_i32 s57, s61, 320
    v_lshlrev_b32 v6, 4, v4
    v_add_u32 v6, s57, v6              ; (80cs + 4g)*4
    v_add_u32 v6, {M2}, v6
    ''')
    GA, G2, SBv = 16, 36, 56
    lane_vec_reads(e, GA, M2_GA)
    lane_vec_reads(e, G2, M2_G2)
    lane_vec_reads(e, SBv, M2_SB)
    X = 120
    Y = 140
    for a in range(5):
        for h in range(2):
            e(f'v_lshlrev_b32 v{X + 4 * a + 2 * h}, 16, v{XT + 2 * a + h}')
            e(f'v_and_b32 v{X + 4 * a + 2 * h + 1}, 0xffff0000, v{XT + 2 * a + h}')
    for k in range(10):
        e(f'v_pk_fma_f32 {v2(X + 2 * k)}, {v2(GA + 2 * k)}, {v2(ACC + 2 * k)}, {v2(X + 2 * k)}')
    for k in range(10):
        e(f'v_cvt_pk_bf16_f32 v{X1P + k}, v{X + 2 * k}, v{X + 2 * k + 1}')
    for k in range(10):
        e(f'v_pk_mul_f32 {v2(Y + 2 * k)}, {v2(X + 2 * k)}, {v2(G2 + 2 * k)}')
    YP = 160
    for k in range(10):
        e(f'v_cvt_pk_bf16_f32 v{YP + k}, v{Y + 2 * k}, v{Y + 2 * k + 1}')
    e(f'''
    s_lshr_b32 s57, s62, 1
    s_lshr_b32 s58, {sW}, 1
    s_add_u32 s57, s57, s58            ; tb32
    s_mul_i32 s96, s57, 40
    s_mul_i32 s58, s61, 5
    s_add_u32 s96, s96, s58
    s_lshl_b32 s96, s96, 10
    s_and_b32 s58, {sW}, 1
    s_lshl_b32 s58, s58, 8
    s_add_u32 s96, s96, s58
    s_add_u32 s96, s96, {WS_X1G}
    s_lshl_b32 s97, s57, 3
    s_add_u32 s97, s97, s61
    s_lshl_b32 s97, s97, 10
    s_lshl_b32 s58, s58, 1
    s_add_u32 s97, s97, s58
    s_add_u32 s97, s97, {WS_STATS}
    v_and_b32 v3, 15, v1               ; t16
    v_lshrrev_b32 v5, 1, v4            ; g>>1
    v_and_b32 v7, 1, v4                ; g&1
    v_lshlrev_b32 v8, 10, v5
    v_lshl_add_u32 v8, v7, 9, v8
    v_lshl_add_u32 v8, v3, 4, v8
    v_lshlrev_b32 v9, 9, v5
    v_lshl_add_u32 v9, v3, 4, v9
    v_lshl_add_u32 v9, v7, 3, v9
    buffer_store_dwordx4 {v4(YP)}, v8, {srd(S_WS)}, s96 offen sc1
    buffer_store_dwordx4 {v4(YP + 4)}, v8, {srd(S_WS)}, s96 offen offset:2048 sc1
    s_add_u32 s96, s96, 4096
    buffer_store_dwordx2 {v2(YP + 8)}, v9, {srd(S_WS)}, s96 offen sc1
    ''')
    ST = 184
    defs = [('add', X, None), ('fma', X, X), ('add', Y, None), ('fma', Y, Y), ('fma', Y, G2), ('fma', Y, SBv)]
    for n, (op, A, B) in enumerate(defs):
        r = ST + 2 * n
        for k in range(10):
            if op == 'add':
                if k == 0:
                    e(f'v_pk_add_f32 {v2(r)}, {v2(A)}, {v2(A + 2)}')
                elif k >= 2:
                    e(f'v_pk_add_f32 {v2(r)}, {v2(r)}, {v2(A + 2 * k)}')
            else:
                if k == 0:
                    e(f'v_pk_mul_f32 {v2(r)}, {v2(A)}, {v2(B)}')
                else:
                    e(f'v_pk_fma_f32 {v2(r)}, {v2(A + 2 * k)}, {v2(B + 2 * k)}, {v2(r)}')
    for n in range(6):
        e(f'v_add_f32 v{ST + 2 * n}, v{ST + 2 * n}, v{ST + 2 * n + 1}')
    for swp in ('v_permlane16_swap_b32', 'v_permlane32_swap_b32'):
        for n in range(6):
            e(f'v_mov_b32 v{ST + 2 * n + 1}, v{ST + 2 * n}')
        for n in range(6):
            e(f'{swp} v{ST + 2 * n}, v{ST + 2 * n + 1}')
        for n in range(6):
            e(f'v_add_f32 v{ST + 2 * n}, v{ST + 2 * n}, v{ST + 2 * n + 1}')
    e(f'''
    v_cmp_eq_u32 vcc, 0, v4
    v_cndmask_b32 v12, v{ST + 8}, v{ST}, vcc
    v_cndmask_b32 v13, v{ST + 10}, v{ST + 2}, vcc
    v_cndmask_b32 v14, 0, v{ST + 4}, vcc
    v_cndmask_b32 v15, 0, v{ST + 6}, vcc
    v_lshlrev_b32 v10, 5, v3
    v_lshl_add_u32 v10, v4, 4, v10
    v_mov_b32 v11, 0xf0000000
    v_cmp_gt_u32 vcc, 2, v4
    v_cndmask_b32 v10, v11, v10, vcc
    buffer_store_dwordx4 v[12:15], v10, {srd(S_WS)}, s97 offen sc1
    ''')
    e.settle()
    e('s_barrier')
    e(f's_lshl_b32 s62, {sI}, 4\n s_add_u32 s62, s62, {sJ}')
    publish_flag(e, FL_X1, 's62')


def wave_allsum(e, r, t):
    dpp_rowsum(e, r)
    for swp in ('v_permlane16_swap_b32', 'v_permlane32_swap_b32'):
        e(f'v_mov_b32 v{t}, v{r}')
        e(f'{swp} v{r}, v{t}')
        e(f'v_add_f32 v{r}, v{r}, v{t}')


def p4(e):
    e(f'''
    s_mul_i32 s57, {sJ}, 122880
    s_mul_i32 s58, {sW}, 30720
    s_add_u32 s57, s57, s58
    s_add_u32 s57, s57, {WS_W1F}
    v_lshlrev_b32 v2, 4, v1
    ''')
    for k in range(30):
        e(f'''
        s_add_u32 s59, s58, {k * 1024}
        s_mov_b32 m0, s59
        buffer_load_dwordx4 v2, {srd(S_WS)}, s57 offen sc1 lds
        s_add_u32 s57, s57, 1024
        ''')
    for rd in range(3):
        e(f'''
        v_add_u32 v3, {256 * rd}, v0       ; p
        v_lshrrev_b32 v4, 4, v3            ; step
        v_mul_u32_u24 v5, 13108, v4
        v_lshrrev_b32 v5, 16, v5
        v_mul_u32_u24 v6, 5, v5
        v_sub_u32 v6, v4, v6               ; q
        v_bfe_u32 v7, v3, 3, 1             ; h
        v_and_b32 v8, 7, v3                ; jj
        v_lshrrev_b32 v9, 2, v8            ; jj>>2
        v_and_b32 v10, 3, v8               ; jj&3
        v_and_b32 v11, 1, v6               ; q&1
        v_lshl_add_u32 v11, v11, 1, v7     ; 2(q&1)+h
        v_lshl_add_u32 v11, v11, 2, v10    ; 4*(..) + (jj&3)
        v_lshl_add_u32 v11, v9, 4, v11     ; + 16*(jj>>2)
        v_lshrrev_b32 v12, 1, v6           ; q>>1
        v_lshl_add_u32 v11, v12, 5, v11    ; + 32*(q>>1)
        v_lshl_add_u32 v12, v7, 3, v8      ; 8h + jj
        v_add_u32 v12, 64, v12
        v_cmp_eq_u32 vcc, 4, v6
        v_cndmask_b32 v11, v11, v12, vcc
        v_mul_u32_u24 v5, 80, v5
        v_add_u32 v11, v11, v5             ; channel
        v_lshlrev_b32 v11, 2, v11
        v_min_u32 v11, 2556, v11
        v_add_u32 v11, {M2}, v11
        ds_read_b32 v13, v11 offset:{M2_G2 - M2}
        ds_read_b32 v14, v11 offset:{M2_SB - M2}
        v_lshlrev_b32 v12, 1, v3
        v_add_u32 v12, {VEC}, v12
        v_mov_b32 v15, 0x3f800000
        ''')
        lbl = None
        if rd == 2:
            lbl = e.new_label('VS')
            e.wait(lg=0)
            e(f'''
            v_cmp_gt_u32 vcc, 640, v3
            s_and_saveexec_b64 s[58:59], vcc
            s_cbranch_execz {lbl}
            ''')
            e.raw('ds_write_b16_d16_hi v12, v13')
            e.raw('ds_write_b16_d16_hi v12, v14 offset:1280')
            e.raw('ds_write_b16_d16_hi v12, v15 offset:2560')
            e.label(lbl)
            e('s_mov_b64 exec, s[58:59]')
            e.force_wait(lg=0)
        else:
            e('ds_write_b16_d16_hi v12, v13')
            e('ds_write_b16_d16_hi v12, v14 offset:1280')
            e('ds_write_b16_d16_hi v12, v15 offset:2560')
    e(f'''
    s_mul_i32 s57, {sJ}, 192
    v_min_u32 v3, 95, v0
    v_lshlrev_b32 v4, 1, v3
    buffer_load_ushort v5, v4, {srd(S_B1)}, s57 offen
    v_lshlrev_b32 v4, 2, v3
    v_add_u32 v4, {UVT + 3 * 384}, v4
    v_lshlrev_b32 v5, 16, v5
    ds_write_b32 v4, v5
    ''')
    C = 200
    e(f'v_mul_u32_u24 v3, 40, v1\n v_add_u32 v3, {M2}, v3')
    for k in range(5):
        e(f'ds_read_b64 {v2(16 + 2 * k)}, v3 offset:{M2_G2 - M2 + 8 * k}')
        e(f'ds_read_b64 {v2(26 + 2 * k)}, v3 offset:{M2_SB - M2 + 8 * k}')
    defs = [('add', 16, None), ('add', 26, None), ('mul', 16, 16), ('mul', 16, 26), ('mul', 26, 26)]
    for n, (op, A, B) in enumerate(defs):
        r = 40 + 2 * n
        for k in range(5):
            if op == 'add':
                if k == 0:
                    e(f'v_pk_add_f32 {v2(r)}, {v2(A)}, {v2(A + 2)}')
                elif k >= 2:
                    e(f'v_pk_add_f32 {v2(r)}, {v2(r)}, {v2(A + 2 * k)}')
            else:
                if k == 0:
                    e(f'v_pk_mul_f32 {v2(r)}, {v2(A)}, {v2(B)}')
                else:
                    e(f'v_pk_fma_f32 {v2(r)}, {v2(A + 2 * k)}, {v2(B + 2 * k)}, {v2(r)}')
        e(f'v_add_f32 v{C + n}, v{r}, v{r + 1}')
    for n in range(5):
        wave_allsum(e, C + n, 60)
        e(f'v_mul_f32 v{C + n}, {hexf(1.0 / 640)}, v{C + n}')
    e.settle()
    e('s_barrier')
    e(f'''
    s_min_u32 s57, {sW}, 2
    s_mul_i32 s58, s57, 40960
    v_lshlrev_b32 v3, 4, v1
    v_add_u32 v3, s58, v3              ; W1 fragment address
    v_and_b32 v4, 31, v1
    v_min_u32 v4, 2, v4
    v_mul_u32_u24 v4, 1280, v4
    v_lshrrev_b32 v5, 5, v1
    v_lshl_add_u32 v4, v5, 4, v4
    v_add_u32 v4, {VEC}, v4
    ''')
    for s in range(40):
        b = 16 + 8 * (s & 3)
        e(f'ds_read_b128 {v4(b)}, v3 offset:{s * 1024}')
        e(f'ds_read_b128 {v4(b + 4)}, v4 offset:{s * 32}')
        c = '0' if s == 0 else vr(64, 16)
        e(f'v_mfma_f32_32x32x16_bf16 {vr(64, 16)}, {v4(b)}, {v4(b + 4)}, {c}')
    e(f'''
    v_and_b32 v4, 31, v1
    v_mul_u32_u24 v4, 384, v4
    v_lshl_add_u32 v4, v5, 4, v4
    s_lshl_b32 s57, s57, 7
    s_add_u32 s57, s57, {UVT}
    v_add_u32 v4, s57, v4
    s_mov_b32 exec_lo, 7
    s_mov_b32 exec_hi, 7
    ''')
    for q in range(4):
        e(f'ds_write_b128 v4, {v4(64 + 4 * q)} offset:{32 * q}')
    e('s_mov_b64 exec, -1')
    e.settle()
    e(f'''
    v_and_b32 v8, 15, v1
    s_lshl_b32 s57, {sI}, 4
    v_add_u32 v8, s57, v8
    v_lshlrev_b32 v8, 7, v8
    v_add_u32 v8, {FL_X1}, v8
    ''')
    poll_flags(e, 8, 1)
    XB = 16
    e(f'''
    s_lshl_b32 s57, {sI}, 2
    s_add_u32 s57, s57, {sW}           ; tb32
    s_mul_i32 s58, s57, 40960
    s_add_u32 s58, s58, {WS_X1G}
    s_lshl_b32 s59, s57, 13
    s_add_u32 s59, s59, {WS_STATS}
    v_lshlrev_b32 v2, 4, v1
    ''')
    SR = 176
    for n in range(5):
        e(f'v_mov_b32 v{224 + n}, v{C + n}')
    C = 224
    for cs in range(8):
        if cs == 4:
            e('s_add_u32 s59, s59, 4096')
        e(f'buffer_load_dwordx4 {v4(SR + 4 * cs)}, v2, {srd(S_WS)}, s59 offen offset:{(cs % 4) * 1024} sc1')
    for s in range(40):
        if s and s % 4 == 0:
            e('s_add_u32 s58, s58, 4096')
        e(f'buffer_load_dwordx4 {v4(XB + 4 * s)}, v2, {srd(S_WS)}, s58 offen offset:{(s % 4) * 1024} sc1')
    for cs in range(1, 8):
        for h in range(2):
            e(f'v_pk_add_f32 {v2(SR + 2 * h)}, {v2(SR + 2 * h)}, {v2(SR + 4 * cs + 2 * h)}')
    T = SR + 8
    for k in range(4):
        e(f'v_mov_b32_dpp v{T + k}, v{SR + k} quad_perm:[1,0,3,2] row_mask:0xf bank_mask:0xf')
    e('v_and_b32 v3, 1, v1\n v_cmp_eq_u32 vcc, 0, v3')
    for k in range(4):
        e(f'v_cndmask_b32 v{SR + 16 + k}, v{T + k}, v{SR + k}, vcc')
    for k in range(2):
        e(f'v_cndmask_b32 v{SR + 20 + k}, v{SR + k}, v{T + k}, vcc')
    Sx, Sxx, Sy, Syy, Syg, Sys = (SR + 16 + k for k in range(6))
    r0 = SR
    inv = hexf(1.0 / 640)
    e(f'''
    v_mul_f32 v{Sx}, {inv}, v{Sx}
    v_mul_f32 v{Sxx}, {inv}, v{Sxx}
    v_mul_f32 v{Sy}, {inv}, v{Sy}
    v_mul_f32 v{Syy}, {inv}, v{Syy}
    v_mul_f32 v{Syg}, {inv}, v{Syg}
    v_mul_f32 v{Sys}, {inv}, v{Sys}
    v_fma_f32 v{r0}, -v{Sx}, v{Sx}, v{Sxx}          ; var1
    v_add_f32 v{r0}, {hexf(1e-5)}, v{r0}
    v_rsq_f32 v{r0}, v{r0}                           ; rs1
    v_fma_f32 v{r0 + 1}, -v{Sx}, v{C}, v{Sy}
    v_fma_f32 v{r0 + 2}, v{r0}, v{r0 + 1}, v{C + 1}  ; m2
    v_mul_f32 v{r0 + 3}, v{Sx}, v{C + 2}             ; m1*cgg
    v_fma_f32 v{r0 + 3}, -2.0, v{Syg}, v{r0 + 3}
    v_fma_f32 v{r0 + 3}, v{Sx}, v{r0 + 3}, v{Syy}    ; B
    v_fma_f32 v{r0 + 4}, -v{Sx}, v{C + 3}, v{Sys}    ; Cc
    v_mul_f32 v{r0 + 5}, v{r0}, v{r0 + 3}            ; rs1*B
    v_fma_f32 v{r0 + 5}, 2.0, v{r0 + 4}, v{r0 + 5}   ; rs1*B + 2C
    v_fma_f32 v{r0 + 5}, v{r0}, v{r0 + 5}, v{C + 4}  ; E2
    v_fma_f32 v{r0 + 5}, -v{r0 + 2}, v{r0 + 2}, v{r0 + 5}   ; var2
    v_add_f32 v{r0 + 5}, {hexf(1e-5)}, v{r0 + 5}
    v_rsq_f32 v{r0 + 5}, v{r0 + 5}                   ; rs2
    v_mul_f32 v{r0 + 8}, v{r0 + 5}, v{r0}            ; alpha
    v_mul_f32 v{r0 + 9}, -v{r0 + 8}, v{Sx}           ; beta
    v_mov_b32 v{r0 + 10}, v{r0 + 5}                  ; gamma
    v_mul_f32 v{r0 + 11}, -v{r0 + 5}, v{r0 + 2}      ; delta
    s_lshl_b32 s57, {sW}, 9
    s_add_u32 s57, s57, {RSB}
    v_lshrrev_b32 v3, 1, v1
    v_lshlrev_b32 v3, 4, v3
    v_add_u32 v3, s57, v3
    ds_write_b128 v3, {v4(r0 + 8)}
    v_and_b32 v3, 31, v1
    v_lshlrev_b32 v3, 4, v3
    v_add_u32 v3, s57, v3
    ''')
    e.wait(lg=0)
    RSC = 224
    e(f'ds_read_b128 {v4(RSC)}, v3')
    WF = [176, 188]
    vW = [200, 201, 202]
    for tau in range(3):
        e(f'v_add_u32 v{vW[tau]}, {tau * 40960}, v2')

    def wreads(s):
        return [f'ds_read_b128 {v4(WF[s & 1] + 4 * t)}, v{vW[t]} offset:{s * 1024}' for t in range(3)]
    for x in wreads(0):
        e(x)
    for s in range(40):
        if s + 1 < 40:
            for x in wreads(s + 1):
                e(x)
        for tau in range(3):
            c = '0' if s == 0 else ar(16 * tau, 16)
            e(f'v_mfma_f32_32x32x16_bf16 {ar(16 * tau, 16)}, {v4(WF[s & 1] + 4 * tau)}, {v4(XB + 4 * s)}, {c}')
    c0 = -2.0 * LOG2E * (2.0 / 3.141592653589793) ** 0.5
    c1 = c0 * 0.044715
    e(f'''
    s_lshl_b32 s57, {sI}, 3
    s_lshl_b32 s58, {sW}, 1
    s_add_u32 s57, s57, s58
    s_mul_i32 s57, s57, 48
    s_mul_i32 s58, {sJ}, 3
    s_add_u32 s57, s57, s58
    s_lshl_b32 s57, s57, 10
    s_add_u32 s96, s57, {WS_HH}
    v_bfe_u32 v3, v1, 4, 1
    v_mul_u32_u24 v3, 49152, v3
    v_and_b32 v4, 15, v1
    v_lshl_add_u32 v3, v4, 4, v3
    v_lshrrev_b32 v4, 5, v1
    v_lshl_add_u32 v3, v4, 8, v3
    v_lshlrev_b32 v4, 4, v4
    v_add_u32 v4, {UVT}, v4
    s_mov_b32 s58, {hexf(c0)}
    s_mov_b32 s59, {hexf(c0)}
    s_mov_b32 s62, {hexf(c1)}
    s_mov_b32 s63, {hexf(c1)}
    ''')
    for tau in range(3):
        Z = 16 + 64 * tau
        K = Z + 16
        TT = Z + 48
        for q in range(4):
            kb = K + 16 * (q & 1)
            for n in range(4):
                e(f'ds_read_b128 {v4(kb + 4 * n)}, v4 offset:{n * 384 + (32 * tau + 8 * q) * 4}')
            for r in range(4):
                e(f'v_accvgpr_read_b32 v{Z + 4 * q + r}, a{16 * tau + 4 * q + r}')
            for h in range(2):
                z = v2(Z + 4 * q + 2 * h)
                e(f'v_pk_fma_f32 {z}, {z}, {v2(RSC)}, {v2(kb + 12 + 2 * h)} op_sel_hi:[1,0,1]')
                e(f'v_pk_fma_f32 {z}, {v2(kb + 2 * h)}, {v2(RSC)}, {z} op_sel:[0,1,0] op_sel_hi:[1,1,1]')
                e(f'v_pk_fma_f32 {z}, {v2(kb + 4 + 2 * h)}, {v2(RSC + 2)}, {z} op_sel_hi:[1,0,1]')
                e(f'v_pk_fma_f32 {z}, {v2(kb + 8 + 2 * h)}, {v2(RSC + 2)}, {z} op_sel:[0,1,0] op_sel_hi:[1,1,1]')
        for k in range(8):
            z = v2(Z + 2 * k)
            t = v2(TT + 2 * (k & 3))
            e(f'v_pk_mul_f32 {t}, {z}, {z}')
            e(f'v_pk_mul_f32 {t}, {t}, s[62:63]')
            e(f'v_pk_add_f32 {t}, {t}, s[58:59]')
            e(f'v_pk_mul_f32 {t}, {t}, {z}')
            e(f'v_exp_f32 v{TT + 2 * (k & 3)}, v{TT + 2 * (k & 3)}')
            e(f'v_exp_f32 v{TT + 2 * (k & 3) + 1}, v{TT + 2 * (k & 3) + 1}')
            e(f'v_pk_add_f32 {t}, {t}, 1.0 op_sel_hi:[1,0]')
            e(f'v_rcp_f32 v{TT + 2 * (k & 3)}, v{TT + 2 * (k & 3)}')
            e(f'v_rcp_f32 v{TT + 2 * (k & 3) + 1}, v{TT + 2 * (k & 3) + 1}')
            e(f'v_pk_mul_f32 {z}, {z}, {t}')
        for k in range(8):
            e(f'v_cvt_pk_bf16_f32 v{TT + 8 + k}, v{Z + 2 * k}, v{Z + 2 * k + 1}')
        e(f'buffer_store_dwordx4 {v4(TT + 8)}, v3, {srd(S_WS)}, s96 offen sc1')
        e(f'buffer_store_dwordx4 {v4(TT + 12)}, v3, {srd(S_WS)}, s96 offen offset:512 sc1')
        e('s_add_u32 s96, s96, 1024')
    e.settle()
    e('s_barrier')
    e(f's_lshl_b32 s62, {sI}, 4\n s_add_u32 s62, s62, {sJ}')
    publish_flag(e, FL_HH, 's62')


def p5(e):
    ksplit_setup(e)
    load_wfrags(e, WS_W2F, 48, 12)
    e(f'''
    v_lshrrev_b32 v4, 4, v1
    s_mul_i32 s63, s61, 160
    v_lshlrev_b32 v7, 3, v4
    ''')
    B2R = 200
    for a in range(5):
        e(f'buffer_load_dwordx2 {v2(B2R + 2 * a)}, v7, {srd(S_B2)}, s63 offen offset:{32 * a}')
    poll_group(e, FL_HH)
    sr = ['s96', 's97', 's98', 's99']
    act_bases(e, WS_HH, 48, 12, sr)
    BF, ACC, DEPTH = 16, 112, 6
    e('v_lshlrev_b32 v2, 4, v1')

    def loads(s):
        for tau in range(4):
            r = BF + ((s % DEPTH) * 4 + tau) * 4
            e(f'buffer_load_dwordx4 {v4(r)}, v2, {srd(S_WS)}, {sr[tau]} offen offset:{(s % 4) * 1024} sc1')
        if s % 4 == 3:
            for tau in range(4):
                e(f's_add_u32 {sr[tau]}, {sr[tau]}, 4096')
    for s in range(DEPTH):
        loads(s)
    for s in range(12):
        for tau in range(4):
            for a in range(5):
                r = v4(ACC + (5 * tau + a) * 4)
                c = '0' if s == 0 else r
                b = BF + ((s % DEPTH) * 4 + tau) * 4
                e(f'v_mfma_f32_16x16x32_bf16 {r}, {a4((5 * s + a) * 4)}, {v4(b)}, {c}')
        if s + DEPTH < 12:
            loads(s + DEPTH)
    e('s_barrier')
    reduce4(e, ACC)
    e(f'''
    v_lshrrev_b32 v4, 4, v1
    s_mul_i32 s57, s61, 320
    v_lshlrev_b32 v6, 4, v4
    v_add_u32 v6, s57, v6
    v_add_u32 v6, {M2}, v6
    ''')
    GBv = 16
    lane_vec_reads(e, GBv, M2_GB)
    X, B = 40, 60
    for a in range(5):
        for h in range(2):
            k = 2 * a + h
            e(f'v_lshlrev_b32 v{X + 2 * k}, 16, v{X1P + k}')
            e(f'v_and_b32 v{X + 2 * k + 1}, 0xffff0000, v{X1P + k}')
            e(f'v_lshlrev_b32 v{B + 2 * k}, 16, v{B2R + k}')
            e(f'v_and_b32 v{B + 2 * k + 1}, 0xffff0000, v{B2R + k}')
    for k in range(10):
        e(f'v_pk_add_f32 {v2(B + 2 * k)}, {v2(B + 2 * k)}, {v2(ACC + 2 * k)}')
        e(f'v_pk_fma_f32 {v2(X + 2 * k)}, {v2(GBv + 2 * k)}, {v2(B + 2 * k)}, {v2(X + 2 * k)}')
    for k in range(10):
        e(f'v_cvt_pk_bf16_f32 v{80 + k}, v{X + 2 * k}, v{X + 2 * k + 1}')
    e(f'''
    s_add_u32 s57, s62, {sW}
    s_lshl_b32 s57, s57, 4
    s_mul_i32 s63, s57, 1280
    s_mul_i32 s58, s61, 160
    s_add_u32 s63, s63, s58
    v_and_b32 v3, 15, v1
    v_mul_u32_u24 v7, 1280, v3
    v_lshl_add_u32 v7, v4, 3, v7
    ''')
    for a in range(5):
        e(f'buffer_store_dwordx2 {v2(80 + 2 * a)}, v7, {srd(S_OUT)}, s63 offen offset:{32 * a}')


def p3_all(e, ts, upto):
    p3(e)
    ts(5)
    if upto >= 4:
        p4(e)
        ts(6)
    if upto >= 5:
        p5(e)
        ts(7)
```

```python
def kernel_wrap(name, body, vgpr=256, agpr=0, sgpr=100):
    accum = (vgpr + 3) // 4 * 4
    nfv = accum + agpr if agpr else vgpr
    t = f'.globl {name}\n.p2align 8\n.type {name},@function\n{name}:\n{body}'
    r = f'''.p2align 6
.amdhsa_kernel {name}
  .amdhsa_next_free_vgpr {nfv}
  .amdhsa_next_free_sgpr {sgpr}
  .amdhsa_accum_offset {accum}
  .amdhsa_group_segment_fixed_size 0
  .amdhsa_kernarg_size 104
  .amdhsa_user_sgpr_count 2
  .amdhsa_user_sgpr_kernarg_segment_ptr 1
  .amdhsa_system_sgpr_workgroup_id_x 1
  .amdhsa_float_denorm_mode_32 3
  .amdhsa_float_denorm_mode_16_64 3
.end_amdhsa_kernel
'''
    return t, r

def file_wrap(launches, kernels, header='', single=False):
    o = []
    if header: o.append(header.rstrip('\n'))
    if single:
        (n, g, b, l) = launches[0]
        o.append(f'; @launch grid=({g[0]},{g[1]},{g[2]}) block=({b[0]},{b[1]},{b[2]}) lds={l}')
    else:
        for (n, g, b, l) in launches:
            o.append(f'; @launch kernel={n} grid=({g[0]},{g[1]},{g[2]}) block=({b[0]},{b[1]},{b[2]}) lds={l}')
    o.append('.amdgcn_target "amdgcn-amd-amdhsa--gfx950"')
    o.append('.text')
    for t, r in kernels: o.append(t)
    o.append('.section .rodata,"a"')
    for t, r in kernels: o.append(r)
    return '\n'.join(o) + '\n'
```

```python
import sys, argparse
from emit import E
from wrap import *
from common import *
import p0, p1

HEADER = open('cdna_kernels/' + NAME + '.s.ref').read().split('; Override launch')[0].rstrip('\n')

def timestamp(e, idx, dbg):
    if not dbg: return
    lbl = e.new_label('TS')
    e(f'''s_cmp_lg_u32 {sW}, 0
    s_cbranch_scc1 {lbl}''')
    e.raw('s_memrealtime s[96:97]')
    e.raw('s_waitcnt lgkmcnt(0)')
    e.raw(f's_lshl_b32 s97, {sB}, 6')
    e.raw(f's_add_u32 s97, s97, {WS_TS + 4 * idx}')
    e.raw('v_mov_b32 v254, s96')
    e.raw('v_mov_b32 v255, 0')
    e.raw('s_mov_b64 exec, 1')
    e.raw(f'buffer_store_dword v254, v255, {srd(S_WS)}, s97 offen')
    e.raw('s_nop 1')
    e.raw('s_mov_b64 exec, -1')
    e.label(lbl)

def build(upto=99, dbg=False):
    e = E()
    END = 'L_END'
    p0.prologue(e, END)
    timestamp(e, 0, dbg)
    LG, LJ = e.new_label('P0G'), e.new_label('P0J')
    e(f's_cmp_ge_u32 {sW}, 2\n s_cbranch_scc1 {LG}')
    XR, XF = p0.p0_ln_path(e)
    p0.p0_ln_compute(e, XR, XF)
    e.settle()
    e(f's_branch {LJ}')
    e.label(LG); e.assume_settled()
    WR, CR = p0.p0_gemv_loads(e)
    p0.p0_gemv_compute(e, WR, CR)
    e.settle()
    e.label(LJ); e.assume_settled()
    e('s_barrier')
    p0.p0_publish_stores(e)
    p0.relayout(e, 0)
    e.settle()
    e('s_barrier')
    p0.publish_flag(e, FL_P0, sB)
    timestamp(e, 1, dbg)
    if upto >= 1:
        p1.p1_prefetch_setup(e)
        p1.p1_dma_addr(e, 249)
        for q in range(p1.NSLOT):
            p1.p1_dma_chunk(e, 249, q, q, 's60')
        e(f'''v_lshlrev_b32 v8, 7, v1
        v_add_u32 v8, {FL_P0}, v8
        v_add_u32 v9, {64 * 128}, v8
        v_add_u32 v10, {128 * 128}, v8
        v_add_u32 v11, {192 * 128}, v8''')
        p0.poll_flags(e, 8, 4)
        timestamp(e, 2, dbg)
        p1.p1_main(e)
        timestamp(e, 3, dbg)
    if upto >= 2:
        import p2
        p2.p2_all(e)
        timestamp(e, 4, dbg)
    if upto >= 3:
        import p3
        p3.p3_all(e, lambda k: timestamp(e, k, dbg), upto)
    lbl = e.new_label('EP')
    e.settle()
    e(f'''s_or_b32 s57, {sB}, {sW}
    s_cmp_lg_u32 s57, 0
    s_cbranch_scc1 {lbl}
    v_mov_b32 v3, {sTAG}
    v_mov_b32 v4, 0
    s_mov_b64 exec, 1''')
    e.raw(f'buffer_store_dword v3, v4, {srd(S_WS)}, 0 offen')
    e.label(lbl)
    timestamp(e, 15, dbg)
    e.label(END)
    e.raw('s_endpgm')
    k = kernel_wrap(NAME + '_kernel', e.text(), vgpr=256, agpr=256, sgpr=100)
    txt = file_wrap([(NAME + '_kernel', (256, 1, 1), (256, 1, 1), LDS_SIZE)], [k], header=HEADER, single=True)
    return txt, e

if __name__ == '__main__':
    ap = argparse.ArgumentParser()
    ap.add_argument('--upto', type=int, default=99)
    ap.add_argument('--dbg', action='store_true')
    ap.add_argument('-o', default='k.s')
    a = ap.parse_args()
    txt, e = build(a.upto, a.dbg)
    open(a.o, 'w').write(txt)
    print(a.o, len(txt), 'bytes', e.stat)
```

```python
NAME = 'adaLN_cond__sliding_block__mixer_channel_mlp__prompt'

WS_EPOCH = 0
FS = 128
FL_BASE = 4096
FL_XN = FL_BASE
FL_MOD = FL_BASE + 65536
FL_QKV = FL_BASE + 81920
FL_O = FL_BASE + 114688
FL_X1 = FL_BASE + 147456
FL_HH = FL_BASE + 180224
FL_REL = FL_BASE + 212992
FL_LATE = FL_REL + 1024
WS_MODP = 0x40000
WS_STATS = 0x60000
WS_TS = 0x1D00000
WS_XN = 0x100000
WS_QKV = 0x400000
WS_OF = 0xC00000
WS_X1G = 0xF00000
WS_HH = 0x1200000
WS_WOF = 0x1800000
WS_W1F = 0x1900000
WS_W2F = 0x1B00000
WS_SIZE = 0x2000000

S_X, S_WQKV, S_WO, S_W1, S_W2, S_WMOD, S_OUT, S_WS, S_C, S_B1, S_B2 = 8, 12, 16, 20, 24, 28, 32, 36, 40, 44, 48
sTAG = 's52'
sI = 's53'
sJ = 's54'
sW = 's55'
sB = 's56'


def srd(n):
    return f's[{n}:{n + 3}]'


def v4(n):
    return f'v[{n}:{n + 3}]'


def v2(n):
    return f'v[{n}:{n + 1}]'


def a4(n):
    return f'a[{n}:{n + 3}]'


def vr(n, k):
    return f'v[{n}:{n + k - 1}]' if k > 1 else f'v{n}'


def ar(n, k):
    return f'a[{n}:{n + k - 1}]' if k > 1 else f'a{n}'


LDS_SIZE = 163840
```

```python
import re

REG_RE = re.compile(r'^(-|\|)?(abs\()?([vas])(\d+|\[\d+:\d+\])\)?\|?$')


def regs_of(tok):
    tok = tok.strip()
    if tok in ('vcc', 'exec'):
        return [tok]
    if tok in ('vcc_lo', 'vcc_hi'):
        return ['vcc']
    if tok in ('exec_lo', 'exec_hi'):
        return ['exec']
    if tok == 'm0':
        return ['m0']
    m = REG_RE.match(tok)
    if not m:
        return []
    f, n = m.group(3), m.group(4)
    if n[0] == '[':
        lo, hi = n[1:-1].split(':')
        return [f'{f}{i}' for i in range(int(lo), int(hi) + 1)]
    return [f + n]


def split_ops(s):
    out, depth, cur = [], 0, ''
    for ch in s:
        if ch in '[(':
            depth += 1
        if ch in '])':
            depth -= 1
        if ch == ',' and depth == 0:
            out.append(cur.strip())
            cur = ''
        else:
            cur += ch
    if cur.strip():
        out.append(cur.strip())
    return out


TRANS = ('v_exp_f32', 'v_log_f32', 'v_rcp_f32', 'v_rsq_f32', 'v_sqrt_f32', 'v_sin_f32', 'v_cos_f32')
RMW = ('v_fmac_', 'v_pk_fmac', 'v_dot2c', 'v_writelane')


class Ins:
    __slots__ = ('text', 'mn', 'defs', 'uses', 'kind', 'passes', 'srcc', 'ab', 'dpp', 'wide_store', 'ws', 'size')

    def __init__(self, text):
        self.text = text
        t = text.strip()
        sp = t.split(None, 1)
        mn = sp[0]
        self.mn = mn
        rest = sp[1] if len(sp) > 1 else ''
        ops = split_ops(rest)
        mods = ''
        if ops:
            last = ops[-1].split(None, 1)
            if len(last) > 1:
                ops[-1] = last[0]
                mods = last[1]
        self.defs, self.uses = [], []
        self.kind = 'other'
        self.passes = 0
        self.srcc, self.ab = [], []
        self.dpp = ('_dpp' in mn) or ('quad_perm' in mods) or ('row_' in mods)
        self.wide_store = False
        self.ws = 1
        R = regs_of
        if mn.startswith('v_mfma'):
            self.kind = 'mfma'
            self.passes = 8 if '32x32x16' in mn else 4 if '16x16x32' in mn else None
            assert self.passes, mn
            self.defs = R(ops[0])
            self.ab = R(ops[1]) + R(ops[2])
            self.srcc = R(ops[3])
            self.uses = self.ab + self.srcc
        elif mn.startswith('v_cmp'):
            self.kind = 'valu'
            self.defs = R(ops[0])
            self.uses = sum((R(o) for o in ops[1:]), [])
            if mn.startswith('v_cmpx'):
                self.defs = self.defs + ['exec']
        elif mn.startswith('v_readfirstlane') or mn.startswith('v_readlane'):
            self.kind = 'valu'
            self.defs = R(ops[0])
            self.uses = sum((R(o) for o in ops[1:]), [])
        elif mn.startswith('v_permlane'):
            self.kind = 'valu'
            self.defs = R(ops[0]) + R(ops[1])
            self.uses = list(self.defs)
        elif mn.startswith('v_'):
            self.kind = 'trans' if any(mn.startswith(x) for x in TRANS) else 'valu'
            self.defs = R(ops[0])
            srcs = ops[1:]
            if mn.startswith(('v_add_co', 'v_sub_co', 'v_addc_co', 'v_subb_co', 'v_subrev_co')):
                self.defs += R(ops[1])
                srcs = ops[2:]
            self.uses = sum((R(o) for o in srcs), [])
            if any(mn.startswith(x) for x in RMW):
                self.uses += self.defs
            if mn.startswith('v_cndmask') and len(ops) == 3:
                self.uses.append('vcc')
            if self.dpp:
                self.uses += self.defs
        elif mn.startswith('ds_read') or mn.startswith('ds_bpermute') or mn.startswith('ds_swizzle') or mn.startswith('ds_permute'):
            self.kind = 'ds_read'
            self.defs = R(ops[0])
            self.uses = sum((R(o) for o in ops[1:]), [])
        elif mn.startswith('ds_write') or mn.startswith('ds_add') or mn.startswith('ds_or'):
            self.kind = 'ds_write'
            self.uses = sum((R(o) for o in ops), [])
        elif mn.startswith('buffer_load') or mn.startswith('global_load'):
            allm = mods + ' ' + (ops[-1] if ops else '')
            if re.search(r'\blds\b', mods):
                self.kind = 'dma'
                self.uses = sum((R(o) for o in ops), []) + ['m0']
            else:
                self.kind = 'vm_load'
                self.defs = R(ops[0])
                self.uses = sum((R(o) for o in ops[1:]), [])
                if 'd16' in mn:
                    self.uses += self.defs
        elif mn.startswith('buffer_store') or mn.startswith('global_store'):
            self.kind = 'vm_store'
            self.uses = sum((R(o) for o in ops), [])
            self.wide_store = mn.endswith('x4') or mn.endswith('x3')
        elif mn.startswith('buffer_atomic') or mn.startswith('global_atomic'):
            self.kind = 'vm_store'
            self.uses = sum((R(o) for o in ops), [])
        elif mn.startswith('buffer_wbl2') or mn.startswith('buffer_inv'):
            self.kind = 'vm_store'
        elif mn.startswith('s_load') or mn.startswith('s_memtime') or mn.startswith('s_memrealtime'):
            self.kind = 'smem'
            self.defs = R(ops[0])
            self.uses = sum((R(o) for o in ops[1:]), [])
        elif mn == 's_nop':
            self.kind = 'nop'
            self.ws = int(ops[0], 0) + 1
        elif mn in ('s_waitcnt', 's_barrier', 's_sleep', 's_setprio', 's_endpgm'):
            self.kind = mn[2:]
        elif mn.startswith('s_cbranch') or mn == 's_branch':
            self.kind = 'branch'
            if 'vcc' in mn:
                self.uses = ['vcc']
            if 'exec' in mn:
                self.uses = ['exec']
            if 'scc' in mn:
                self.uses = ['scc']
        elif mn.startswith('s_cmp') or mn.startswith('s_bitcmp'):
            self.kind = 'salu'
            self.defs = ['scc']
            self.uses = sum((R(o) for o in ops), [])
        elif mn.startswith('s_'):
            self.kind = 'salu'
            self.defs = R(ops[0])
            self.uses = sum((R(o) for o in ops[1:]), [])
            if 'saveexec' in mn:
                self.defs += ['exec', 'scc']
                self.uses += ['exec']
            if mn.startswith(('s_add', 's_sub', 's_and', 's_or', 's_xor', 's_lshl', 's_lshr', 's_ashr', 's_min', 's_max', 's_not', 's_andn2', 's_bfe', 's_mul_hi')):
                if not mn.startswith('s_mul_hi'):
                    self.defs += ['scc']
            if mn.startswith(('s_addc', 's_subb', 's_cselect', 's_cmov')):
                self.uses += ['scc']
            if mn.startswith('s_addk') or mn.startswith('s_mulk'):
                self.uses += self.defs
        else:
            raise ValueError('unknown instruction: ' + text)
        if self.kind in ('valu', 'trans', 'vm_load', 'vm_store', 'dma', 'ds_read', 'ds_write', 'mfma'):
            pass


def is_vec(r):
    return r[0] in 'va' and r not in ('vcc',)


class E:
    def __init__(self, check=True):
        self.out = []
        self.vm_n = 0
        self.lg_n = 0
        self.vm_done = 0
        self.lg_done = 0
        self.pend = {}
        self.smem_pend = set()
        self.vm_upper = 0
        self.uid = 0
        self.hist = []
        self.stat = {}
        self.cold = []

    def comment(self, s):
        self.out.append('; ' + s)

    def new_label(self, p='L'):
        self.uid += 1
        return f'{p}_{self.uid}'

    def label(self, name):
        self.out.append(name + ':')

    def raw(self, text):
        i = Ins(text)
        self.out.append(i)
        self.hist.append(i)
        if len(self.hist) > 40:
            self.hist.pop(0)
        self.stat[i.kind] = self.stat.get(i.kind, 0) + 1
        return i

    def wait(self, vm=None, lg=None):
        parts = []
        if vm is not None:
            vm = min(vm, 63)
            if self.vm_n - self.vm_done > vm:
                parts.append(f'vmcnt({vm})')
                self.vm_done = self.vm_n - vm
                self.vm_upper = min(self.vm_upper, vm)
        if lg is not None:
            lg = min(lg, 15)
            if self.lg_n - self.lg_done > lg or (lg == 0 and self.smem_pend):
                parts.append(f'lgkmcnt({lg})')
                self.lg_done = max(self.lg_done, self.lg_n - lg)
                if lg == 0:
                    self.smem_pend.clear()
        if parts:
            self.raw('s_waitcnt ' + ' '.join(parts))
        self._clean()

    def force_wait(self, vm=None, lg=None):
        parts = []
        if vm is not None:
            parts.append(f'vmcnt({vm})')
            self.vm_done = max(self.vm_done, self.vm_n - vm)
            self.vm_upper = min(self.vm_upper, vm)
        if lg is not None:
            parts.append(f'lgkmcnt({lg})')
            self.lg_done = max(self.lg_done, self.lg_n - lg)
            if lg == 0:
                self.smem_pend.clear()
        self.raw('s_waitcnt ' + ' '.join(parts))
        self._clean()

    def _clean(self):
        for r in list(self.pend):
            c, i = self.pend[r]
            if (c == 'vm' and i < self.vm_done) or (c == 'lg' and i < self.lg_done):
                del self.pend[r]

    def vm_token(self):
        return self.vm_n - 1

    def lg_token(self):
        return self.lg_n - 1

    def wait_vm_tok(self, tok):
        if tok is None or tok < self.vm_done:
            return
        self.wait(vm=self.vm_n - 1 - tok)

    def wait_lg_tok(self, tok):
        if tok is None or tok < self.lg_done:
            return
        self.wait(lg=self.lg_n - 1 - tok)

    def settle(self, vm=True, lg=True):
        self.wait(vm=0 if vm else None, lg=0 if lg else None)

    def maybe_vm(self, n):
        self.vm_upper += n

    def assume_settled(self, vm_upper=0):
        self.vm_done = self.vm_n
        self.vm_upper = vm_upper
        self.lg_done = self.lg_n
        self.pend.clear()
        self.smem_pend.clear()

    def _need_nops(self, i):
        need = 0
        dist = 0
        for p in reversed(self.hist):
            req = 0
            pd = set(p.defs)
            iu, idf = set(i.uses), set(i.defs)
            if p.kind in ('valu', 'trans'):
                vd = {r for r in pd if is_vec(r)}
                sd = {r for r in pd if (r[0] == 's' or r == 'vcc')}
                if i.kind == 'mfma' and vd & iu:
                    req = max(req, 2)
                if i.mn.startswith('v_permlane') and vd & iu:
                    req = max(req, 2)
                if i.dpp and vd & iu:
                    req = max(req, 2)
                if (i.mn.startswith('v_readlane') or i.mn.startswith('v_readfirstlane')) and vd & iu:
                    req = max(req, 1)
                if p.kind == 'trans' and i.kind in ('valu', 'trans', 'mfma', 'ds_write', 'vm_store') and vd & iu and i.kind != 'trans':
                    req = max(req, 1)
                if sd & iu:
                    if i.kind in ('vm_load', 'vm_store', 'dma'):
                        req = max(req, 5)
                    elif i.kind in ('valu', 'trans'):
                        req = max(req, 2)
                        if i.mn.startswith(('v_readlane', 'v_writelane')):
                            req = max(req, 4)
                    elif i.kind in ('salu', 'branch'):
                        req = max(req, 1)
                if 'exec' in pd and i.kind == 'mfma':
                    req = max(req, 4)
                if 'exec' in pd and i.dpp:
                    req = max(req, 5)
                if 'exec' in pd and (i.mn.startswith('v_readlane') or i.mn.startswith('v_readfirstlane') or i.mn.startswith('v_permlane')):
                    req = max(req, 4)
            if p.kind == 'mfma':
                big = p.passes == 8
                if i.kind == 'mfma':
                    if pd & set(i.ab):
                        req = max(req, 12 if big else 8)
                    c = set(i.srcc)
                    if pd & c:
                        if not (c == pd and i.passes == p.passes):
                            req = max(req, 10 if big else 6)
                    d = set(i.defs)
                    if (pd & d) and not (c == pd and d == pd and i.passes == p.passes):
                        req = max(req, 10 if big else 6)
                elif i.kind in ('valu', 'trans', 'ds_read', 'ds_write', 'vm_load', 'vm_store', 'dma'):
                    if pd & (iu | idf):
                        req = max(req, 12 if big else 8)
                    if i.kind in ('valu', 'trans') and set(p.srcc) & idf:
                        req = max(req, 7 if big else 3)
                    if i.kind in ('ds_read', 'vm_load') and set(p.srcc) & idf:
                        req = max(req, 7 if big else 3)
            if p.kind == 'vm_store' and p.wide_store:
                if i.kind in ('valu', 'trans') and set(p.uses) & {r for r in idf if is_vec(r)}:
                    req = max(req, 2)
                elif i.kind in ('vm_load', 'ds_read', 'mfma') and set(p.uses) & {r for r in idf if is_vec(r)}:
                    req = max(req, 1)
            if p.kind == 'salu' and 'm0' in pd and i.kind == 'dma':
                req = max(req, 1)
            if p.kind == 'salu' and 'exec' in pd and i.kind == 'mfma':
                req = max(req, 1)
            if req > dist:
                need = max(need, req - dist)
            dist += p.ws
            if dist >= 20:
                break
        return need

    def __call__(self, text, nowait=False):
        last = None
        for line in text.split('\n'):
            line = line.strip()
            if not line or line.startswith(';'):
                continue
            if line.endswith(':'):
                self.label(line[:-1])
                continue
            last = self._one(line, nowait)
        return last

    def _one(self, line, nowait):
        i = Ins(line)
        if not nowait:
            nv, nl = None, None
            touch = set(i.uses) | set(i.defs)
            for r in touch:
                if r in self.pend:
                    c, idx = self.pend[r]
                    if c == 'vm':
                        if i.kind == 'vm_load' and r in i.defs and r not in i.uses:
                            continue
                        n = self.vm_n - 1 - idx
                        nv = n if nv is None else min(nv, n)
                    else:
                        if i.kind == 'ds_read' and r in i.defs and r not in i.uses:
                            continue
                        n = self.lg_n - 1 - idx
                        nl = n if nl is None else min(nl, n)
                if r in self.smem_pend:
                    nl = 0
            if nv is not None or nl is not None:
                self.wait(vm=nv, lg=nl)
        if i.kind in ('vm_load', 'vm_store', 'dma') and (self.vm_n - self.vm_done >= 63 or self.vm_upper >= 63):
            self.force_wait(vm=62)
        if i.kind in ('ds_read', 'ds_write') and self.lg_n - self.lg_done >= 15:
            self.wait(lg=14)
        n = self._need_nops(i)
        while n > 0:
            k = min(n, 16)
            self.raw(f's_nop {k - 1}')
            n -= k
        self.out.append(i)
        self.hist.append(i)
        if len(self.hist) > 40:
            self.hist.pop(0)
        self.stat[i.kind] = self.stat.get(i.kind, 0) + 1
        if i.kind in ('vm_load', 'vm_store', 'dma'):
            self.vm_upper += 1
        if i.kind == 'vm_load':
            for r in i.defs:
                self.pend[r] = ('vm', self.vm_n)
            self.vm_n += 1
        elif i.kind in ('vm_store', 'dma'):
            self.vm_n += 1
        elif i.kind == 'ds_read':
            for r in i.defs:
                self.pend[r] = ('lg', self.lg_n)
            self.lg_n += 1
        elif i.kind == 'ds_write':
            self.lg_n += 1
        elif i.kind == 'smem':
            for r in i.defs:
                self.smem_pend.add(r)
            self.smem_pend.add('_smem')
        return i

    def text(self):
        o = []
        for x in self.out:
            if isinstance(x, Ins):
                o.append('    ' + x.text)
            else:
                o.append(x)
        return '\n'.join(o) + '\n'
```

```python
from common import *

LOG2E = 1.4426950408889634


def f2u(x):
    import struct
    return struct.unpack('<I', struct.pack('<f', x))[0]


def hexf(x):
    return hex(f2u(x))


SRD_TAB = {S_X: (64, 2621440), S_WQKV: (66, 2457600), S_WO: (68, 819200), S_W1: (72, 1966080), S_W2: (76, 1966080),
           S_WMOD: (82, 4915200), S_OUT: (84, 2621440), S_WS: (88, WS_SIZE), S_C: (80, 1280), S_B1: (74, 3072), S_B2: (78, 1280)}


def build_srd(e, sr):
    p, size = SRD_TAB[sr]
    e(f'''
    s_mov_b32 s{sr}, s{p}
    s_and_b32 s{sr + 1}, s{p + 1}, 0xffff
    s_mov_b32 s{sr + 2}, {size}
    s_mov_b32 s{sr + 3}, 0x20000
    ''')


def prologue(e, end_label):
    e(f'''
    s_cmp_ge_u32 s2, 256
    s_cbranch_scc1 {end_label}
    s_load_dwordx16 s[64:79], s[0:1], 0
    s_load_dwordx8 s[80:87], s[0:1], 64
    s_load_dwordx2 s[88:89], s[0:1], 96
    v_and_b32 v1, 63, v0
    v_lshrrev_b32 v3, 6, v0
    s_mov_b32 {sB}, s2
    s_and_b32 s57, s2, 7
    s_lshr_b32 s58, s2, 3
    v_readfirstlane_b32 {sW}, v3
    s_and_b32 {sJ}, s58, 15
    s_lshr_b32 s58, s58, 4
    s_lshl_b32 s57, s57, 1
    s_add_u32 {sI}, s57, s58
    v_lshlrev_b32 v2, 4, v1
    ''')
    e.force_wait(lg=0)
    e('s_load_dword s90, s[88:89], 0')
    for sr in (S_X, S_C, S_WMOD, S_WQKV, S_WS, S_WO, S_W1, S_W2, S_OUT, S_B1, S_B2):
        build_srd(e, sr)


def get_tag(e):
    e.force_wait(lg=0)
    e(f's_add_u32 {sTAG}, s90, 0x9e3779b9')


def dpp_rowsum(e, r):
    for n in (8, 4, 2, 1):
        e(f'v_add_f32_dpp v{r}, v{r}, v{r} row_ror:{n} row_mask:0xf bank_mask:0xf')


LDS_MISC = 147456
LN_T = LDS_MISC


def wave_flag(e, base, idx_sgpr):
    e(f'''
    s_lshl_b32 s57, {idx_sgpr}, 7
    s_add_u32 s57, s57, {base}
    v_mov_b32 v3, {sTAG}
    v_mov_b32 v4, 0
    s_mov_b64 exec, 1
    ''')
    e.raw(f'buffer_store_dword v3, v4, {srd(S_WS)}, s57 offen sc1')
    e.raw('s_nop 1')
    e('s_mov_b64 exec, -1')


def p0_ln(e):
    XR, XF = 16, 40
    e(f'''
    s_lshl_b32 s57, {sI}, 7
    s_lshl_b32 s58, {sJ}, 3
    s_add_u32 s57, s57, s58            ; T0
    s_mul_i32 s58, s57, 1280
    v_lshrrev_b32 v3, 4, v0            ; r = tid>>4  (0..7)
    v_and_b32 v4, 15, v0               ; c16
    v_mul_u32_u24 v5, 1280, v3
    v_lshl_add_u32 v5, v4, 4, v5
    ''')
    for u in range(5):
        e(f'buffer_load_dwordx4 {v4(XR + 4 * u)}, v5, {srd(S_X)}, s58 offen offset:{256 * u}')
    e(f'''
    s_mul_i32 s59, {sW}, 6400
    s_add_u32 s59, s59, {LN_T}
    v_and_b32 v3, 3, v3
    v_mul_u32_u24 v12, 80, v4
    v_lshl_add_u32 v12, v3, 4, v12
    v_add_u32 v12, s59, v12
    v_lshrrev_b32 v5, 2, v1            ; gi_local
    v_and_b32 v7, 3, v1                ; token
    v_mul_u32_u24 v13, 80, v5
    v_lshl_add_u32 v13, v7, 4, v13
    v_add_u32 v13, s59, v13
    v_lshrrev_b32 v14, 1, v5
    v_lshlrev_b32 v14, 10, v14
    v_and_b32 v5, 1, v5
    v_lshl_add_u32 v14, v5, 9, v14
    v_lshl_add_u32 v14, v7, 4, v14
    s_lshl_b32 s58, {sI}, 2
    s_lshr_b32 s59, {sJ}, 2
    s_add_u32 s58, s58, s59            ; tb32
    s_mul_i32 s58, s58, 40960
    s_and_b32 s59, {sJ}, 3
    s_lshl_b32 s59, s59, 7
    s_add_u32 s58, s58, s59
    s_lshl_b32 s59, {sW}, 6            ; 4 tokens * 16 B
    s_add_u32 s58, s58, s59
    s_add_u32 s62, s58, {WS_XN}
    ''')
    get_tag(e)
    for d in range(20):
        e(f'v_lshlrev_b32 v{XF + 2 * d}, 16, v{XR + d}')
        e(f'v_and_b32 v{XF + 2 * d + 1}, 0xffff0000, v{XR + d}')
    e(f'v_pk_add_f32 v[6:7], {v2(XF)}, {v2(XF + 2)}')
    e(f'v_pk_add_f32 v[8:9], {v2(XF + 4)}, {v2(XF + 6)}')
    for d in range(4, 20, 2):
        e(f'v_pk_add_f32 v[6:7], v[6:7], {v2(XF + 2 * d)}')
        e(f'v_pk_add_f32 v[8:9], v[8:9], {v2(XF + 2 * d + 2)}')
    e('v_pk_add_f32 v[6:7], v[6:7], v[8:9]')
    e('v_add_f32 v6, v6, v7')
    dpp_rowsum(e, 6)
    e(f'v_mul_f32 v6, {hexf(-1.0 / 640)}, v6')
    for d in range(20):
        e(f'v_pk_add_f32 {v2(XF + 2 * d)}, {v2(XF + 2 * d)}, v[6:7] op_sel_hi:[1,0]')
    e(f'v_pk_mul_f32 v[8:9], {v2(XF)}, {v2(XF)}')
    e(f'v_pk_mul_f32 v[10:11], {v2(XF + 2)}, {v2(XF + 2)}')
    for d in range(2, 20, 2):
        e(f'v_pk_fma_f32 v[8:9], {v2(XF + 2 * d)}, {v2(XF + 2 * d)}, v[8:9]')
        e(f'v_pk_fma_f32 v[10:11], {v2(XF + 2 * d + 2)}, {v2(XF + 2 * d + 2)}, v[10:11]')
    e('v_pk_add_f32 v[8:9], v[8:9], v[10:11]')
    e('v_add_f32 v8, v8, v9')
    dpp_rowsum(e, 8)
    e(f'v_mov_b32 v9, {hexf(1e-5)}')
    e(f'v_mov_b32 v10, {hexf(1.0 / 640)}')
    e('v_fma_f32 v8, v8, v10, v9')
    e('v_rsq_f32 v8, v8')
    for u in range(5):
        for d in range(4 * u, 4 * u + 4):
            e(f'v_pk_mul_f32 {v2(XF + 2 * d)}, {v2(XF + 2 * d)}, v[8:9] op_sel_hi:[1,0]')
        for d in range(4 * u, 4 * u + 4):
            e(f'v_cvt_pk_f16_f32 v{XR + d}, v{XF + 2 * d}, v{XF + 2 * d + 1}')
        e(f'ds_write_b128 v12, {v4(XR + 4 * u)} offset:{u * 16 * 80}')
    e.wait(lg=0)
    for u in range(5):
        e(f'ds_read_b128 {v4(XF + 4 * u)}, v13 offset:{u * 16 * 80}')
    for u in range(5):
        e(f'buffer_store_dwordx4 {v4(XF + 4 * u)}, v14, {srd(S_WS)}, s62 offen sc1')
        if u < 4:
            e('s_add_u32 s62, s62, 8192')
    e(f'''
    s_lshl_b32 s58, {sI}, 4
    s_add_u32 s58, s58, {sJ}
    s_lshl_b32 s58, s58, 1
    s_add_u32 s58, s58, {sW}
    ''')
    e.settle()
    wave_flag(e, FL_XN, 's58')


def gemv_unit(e):
    WR, CR, SV = 16, 96, 116
    e(f'''
    s_mul_i32 s59, s61, 160            ; k0
    s_lshl_b32 s62, s59, 1
    s_mul_i32 s63, s59, 7680
    s_lshl_b32 s58, s60, 7
    s_add_u32 s63, s63, s58
    v_lshrrev_b32 v3, 3, v1            ; l>>3
    v_and_b32 v4, 7, v1
    v_mul_u32_u24 v5, 7680, v3
    v_lshl_add_u32 v5, v4, 4, v5
    v_lshlrev_b32 v6, 1, v3
    ''')
    for u in range(20):
        e(f'buffer_load_ushort v{CR + u}, v6, {srd(S_C)}, s62 offen offset:{16 * u}')
    for u in range(20):
        e(f'buffer_load_dwordx4 {v4(WR + 4 * u)}, v5, {srd(S_WMOD)}, s63 offen')
        if u < 19:
            e('s_add_u32 s63, s63, 61440')
    T = 160
    for g0 in (0, 10):
        rng = range(g0, g0 + 10)
        for u in rng:
            e(f'v_lshlrev_b32 v{CR + u}, 16, v{CR + u}')
        for u in rng:
            e(f'v_mul_f32 v{T + u - g0}, {hexf(-LOG2E)}, v{CR + u}')
        for u in rng:
            e(f'v_exp_f32 v{T + u - g0}, v{T + u - g0}')
        for u in rng:
            e(f'v_add_f32 v{T + u - g0}, 1.0, v{T + u - g0}')
        for u in rng:
            e(f'v_rcp_f32 v{T + u - g0}, v{T + u - g0}')
        for u in rng:
            e(f'v_mul_f32 v{T + u - g0}, v{CR + u}, v{T + u - g0}')
        for u in rng:
            e(f'v_cvt_pk_bf16_f32 v{T + u - g0}, v{T + u - g0}, v{T + u - g0}')
        for u in rng:
            e(f'v_lshlrev_b32 v{SV + 2 * u}, 16, v{T + u - g0}')
    ACC = 8
    for u in range(20):
        for d in range(4):
            t = 172 + 2 * (d & 1) + 4 * (u & 1)
            e(f'v_lshlrev_b32 v{t}, 16, v{WR + 4 * u + d}')
            e(f'v_and_b32 v{t + 1}, 0xffff0000, v{WR + 4 * u + d}')
            if u == 0:
                e(f'v_pk_mul_f32 {v2(ACC + 2 * d)}, {v2(t)}, {v2(SV + 2 * u)} op_sel_hi:[1,0]')
            else:
                e(f'v_pk_fma_f32 {v2(ACC + 2 * d)}, {v2(t)}, {v2(SV + 2 * u)}, {v2(ACC + 2 * d)} op_sel_hi:[1,0,1]')
    for k in range(8):
        e(f'v_add_f32_dpp v{ACC + k}, v{ACC + k}, v{ACC + k} row_ror:8 row_mask:0xf bank_mask:0xf')
    for swp in ('v_permlane16_swap_b32', 'v_permlane32_swap_b32'):
        for k in range(8):
            e(f'v_mov_b32 v{20 + k}, v{ACC + k}')
        for k in range(8):
            e(f'{swp} v{ACC + k}, v{20 + k}')
        for k in range(8):
            e(f'v_add_f32 v{ACC + k}, v{ACC + k}, v{20 + k}')
    e(f'''
    s_mul_i32 s58, s61, 15360
    s_lshl_b32 s59, s60, 8
    s_add_u32 s58, s58, s59
    s_add_u32 s58, s58, {WS_MODP}
    v_lshlrev_b32 v6, 5, v4
    v_mov_b32 v7, 0xf0000000
    v_cmp_gt_u32 vcc, 8, v1
    v_cndmask_b32 v6, v7, v6, vcc
    buffer_store_dwordx4 v[8:11], v6, {srd(S_WS)}, s58 offen sc1
    buffer_store_dwordx4 v[12:15], v6, {srd(S_WS)}, s58 offen offset:16 sc1
    ''')


def wq_dma_addr(e, vreg):
    e(f'''
    v_lshrrev_b32 v3, 4, v1
    v_lshlrev_b32 v4, 2, v3
    v_sub_u32 v4, v1, v4
    v_and_b32 v4, 15, v4
    v_mul_u32_u24 v{vreg}, 3840, v3
    v_lshl_add_u32 v{vreg}, v4, 4, v{vreg}
    ''')


def wq_dma_chunk_1wave(e, vreg, chunk, slot, sCol):
    for u in range(16):
        e(f'''
        s_mov_b32 m0, {slot * 16384 + u * 1024}
        s_add_u32 s57, {sCol}, {(64 * chunk + 4 * u) * 3840}
        ''')
        e(f'buffer_load_dwordx4 v{vreg}, {srd(S_WQKV)}, s57 offen lds')


def code_prefetch(e, start_label, end_label):
    e(f'''
    s_getpc_b64 s[92:93]
    ''')
    here = e.new_label('PCH')
    e.label(here)
    e(f'''
    s_lshr_b32 s57, {sB}, 3
    s_lshl_b32 s57, s57, 11
    v_add_u32 v10, s57, v2
    v_add_u32 v11, 1024, v10
    v_min_u32 v10, {end_label}-{here}-16, v10
    v_min_u32 v11, {end_label}-{here}-16, v11
    global_load_dwordx4 a[248:251], v10, s[92:93]
    global_load_dwordx4 a[252:255], v11, s[92:93]
    ''')


def p0(e, end_label, code_end):
    LG, LD, LJ = e.new_label('P0G'), e.new_label('P0DM'), e.new_label('P0J')
    e(f'''
    s_cmp_eq_u32 {sW}, 2
    s_cbranch_scc1 {LG}
    s_cmp_eq_u32 {sW}, 3
    s_cbranch_scc1 {LD}
    ''')
    snap = (e.vm_n, e.lg_n)
    p0_ln(e)
    e(f's_branch {LJ}')
    e.label(LG)
    e.assume_settled()
    e.smem_pend.update(['s90', '_smem'])
    LLATE, LG_DMA, LG_END = e.new_label('GL'), e.new_label('GD'), e.new_label('GE')
    e(f'''
    s_min_u32 s59, {sJ}, 14
    s_lshl_b32 s96, s59, 8
    s_cmp_ge_u32 {sB}, 80
    s_cbranch_scc1 {LLATE}
    s_mul_i32 s61, {sB}, 3277
    s_lshr_b32 s61, s61, 16            ; ks = b/20
    s_mul_i32 s60, s61, 20
    s_sub_u32 s60, {sB}, s60           ; cg
    ''')
    gemv_unit(e)
    get_tag(e)
    e.settle()
    wave_flag(e, FL_MOD, sB)
    wq_dma_addr(e, 15)
    sk = e.new_label('GS')
    e(f's_cmp_eq_u32 {sJ}, 15\n s_cbranch_scc1 {sk}')
    for q in range(5, 9):
        wq_dma_chunk_1wave(e, 15, q, q, 's96')
    e.label(sk)
    e.force_wait(vm=14)
    e(f's_branch {LJ}')
    e.label(LLATE)
    e.assume_settled()
    e.smem_pend.update(['s90', '_smem'])
    get_tag(e)
    wq_dma_addr(e, 15)
    sk = e.new_label('GS')
    e(f's_cmp_eq_u32 {sJ}, 15\n s_cbranch_scc1 {sk}')
    for q in range(5, 9):
        wq_dma_chunk_1wave(e, 15, q, q, 's96')
    e.label(sk)
    e.assume_settled(63)
    nog = e.new_label('NOG')
    e(f'''
    s_cmp_lt_u32 {sB}, 240
    s_cbranch_scc1 {nog}
    s_waitcnt vmcnt(14)
    s_branch {LJ}
    {nog}:
    s_sub_u32 s57, {sB}, 80
    s_mul_i32 s61, s57, 1639
    s_lshr_b32 s61, s61, 16            ; ks = (b-80)/40
    s_mul_i32 s60, s61, 40
    s_sub_u32 s60, s57, s60
    s_add_u32 s60, s60, 20             ; cg
    ''')
    gemv_unit(e)
    e(f's_branch {LJ}')
    e.label(LD)
    e.assume_settled()
    e.smem_pend.update(['s90', '_smem'])
    code_prefetch(e, None, code_end)
    get_tag(e)
    e.force_wait(vm=0)
    e(f'''
    s_min_u32 s59, {sJ}, 14
    s_lshl_b32 s96, s59, 8
    ''')
    wq_dma_addr(e, 15)
    e(f's_cmp_eq_u32 {sJ}, 15\n s_cbranch_scc1 {LJ}')
    for q in range(0, 5):
        wq_dma_chunk_1wave(e, 15, q, q, 's96')
    e.force_wait(vm=14)
    e.label(LJ)
    e.assume_settled(14)
    for b in range(300):
        assert (b * 3277) >> 16 == b // 20 or b >= 80
        assert (b * 1639) >> 16 == b // 40 or b >= 160


N_W2, N_W1A, N_W1B, N_WOM, N_WOT = 480, 384, 96, 160, 40
U_W1A = N_W2
U_W1B = U_W1A + N_W1A
U_WOM = U_W1B + N_W1B
U_WOT = U_WOM + N_WOM
U_END = U_WOT + N_WOT
RL_V = 208
RL_S = 64
RL_STAGE = 16384


def divmod_s(e, q, r, x, d, lim):
    m = (65536 + d - 1) // d
    for xx in range(lim):
        assert (xx * m) >> 16 == xx // d, (xx, d)
    e(f'''
    s_mul_i32 {q}, {x}, {m}
    s_lshr_b32 {q}, {q}, 16
    s_mul_i32 {r}, {q}, {d}
    s_sub_u32 {r}, {x}, {r}
    ''')


def relayout_setup(e, rnd):
    V = RL_V + 8 * rnd
    S = RL_S + 8 * rnd
    sU = 's80'
    LW2, LWOM, LWOT, LW1A, LW1B, L16, L32, LNONE, LD = (e.new_label(x) for x in ('RW2', 'RWOM', 'RWOT', 'RW1A', 'RW1B', 'RL16', 'RL32', 'RLN', 'RLD'))
    e(f'''
    s_lshl_b32 {sU}, {sB}, 2
    s_add_u32 {sU}, {sU}, {sW}
    s_add_u32 {sU}, {sU}, {1024 * rnd}
    s_lshl_b32 s81, {sW}, 12
    s_add_u32 s81, s81, {RL_STAGE + 16384 * rnd}
    v_lshrrev_b32 v3, 3, v1            ; jj
    v_and_b32 v4, 7, v1                ; granule
    v_and_b32 v5, 3, v3
    v_lshrrev_b32 v6, 2, v3
    s_cmp_ge_u32 {sU}, {U_END}
    s_cbranch_scc1 {LNONE}
    s_cmp_lt_u32 {sU}, {U_W1A}
    s_cbranch_scc1 {LW2}
    s_cmp_lt_u32 {sU}, {U_W1B}
    s_cbranch_scc1 {LW1A}
    s_cmp_lt_u32 {sU}, {U_WOM}
    s_cbranch_scc1 {LW1B}
    s_cmp_lt_u32 {sU}, {U_WOT}
    s_cbranch_scc1 {LWOM}
    s_branch {LWOT}
    ''')

    def srdcopy(src):
        e(f'''
        s_mov_b32 s{S}, s{src}
        s_mov_b32 s{S + 1}, s{src + 1}
        s_mov_b32 s{S + 2}, s{src + 2}
        s_mov_b32 s{S + 3}, 0x20000
        ''')
    e.label(LW2)
    divmod_s(e, 's82', 's83', sU, 10, 480)
    e(f'''
    v_lshl_add_u32 v7, v6, 3, v5
    s_lshl_b32 s84, s82, 5
    s_mov_b32 s85, 0
    s_mov_b32 s86, 4
    s_mov_b32 s87, 16
    s_mov_b32 s88, 20
    s_mov_b32 s89, {WS_W2F}
    s_mov_b32 s91, 48
    ''')
    srdcopy(S_W2)
    e(f's_branch {L16}')
    e.label(LWOM)
    e(f's_sub_u32 s57, {sU}, {U_WOM}')
    divmod_s(e, 's82', 's83', 's57', 10, 160)
    e(f'''
    v_lshl_add_u32 v7, v6, 3, v5
    s_mul_i32 s84, s82, 40
    s_mov_b32 s85, 0
    s_mov_b32 s86, 4
    s_mov_b32 s87, 20
    s_mov_b32 s88, 24
    s_mov_b32 s89, {WS_WOF}
    s_mov_b32 s91, 20
    ''')
    srdcopy(S_WO)
    e(f's_branch {L16}')
    e.label(LWOT)
    e(f's_sub_u32 s57, {sU}, {U_WOT}')
    divmod_s(e, 's82', 's83', 's57', 10, 40)
    e(f'''
    v_mul_u32_u24 v7, 20, v6
    v_add_u32 v7, v7, v5
    s_mul_i32 s84, s82, 160
    s_add_u32 s82, s82, 16
    s_mov_b32 s85, 16
    s_mov_b32 s86, 56
    s_mov_b32 s87, 96
    s_mov_b32 s88, 136
    s_mov_b32 s89, {WS_WOF}
    s_mov_b32 s91, 20
    ''')
    srdcopy(S_WO)
    e.label(L16)
    e(f'''
    v_mul_u32_u24 v7, 1280, v7
    v_lshl_add_u32 v7, v4, 4, v7
    s_lshl_b32 s58, s83, 7
    ''')
    for u in range(4):
        e(f'''
        s_add_u32 s57, s84, s{85 + u}
        s_mul_i32 s57, s57, 1280
        s_add_u32 s57, s57, s58
        v_add_u32 v{V + u}, s57, v7
        ''')
    e(f'''
    v_lshrrev_b32 v8, 4, v1            ; g
    v_bfe_u32 v9, v1, 2, 2             ; r
    v_lshl_add_u32 v8, v8, 3, v9
    v_lshlrev_b32 v8, 7, v8
    v_and_b32 v9, 3, v1
    v_lshl_add_u32 v8, v9, 3, v8
    v_add_u32 v8, s81, v8
    ''')
    for q in range(4):
        e(f'v_add_u32 v{V + 4 + q}, {32 * q}, v8')
        e(f's_lshl_b32 s58, s83, 2\n s_add_u32 s58, s58, {q}')
        divmod_s(e, 's59', 's60', 's58', 5, 40)
        e(f'''
        s_mul_i32 s59, s59, s91
        s_add_u32 s59, s59, s82
        s_mul_i32 s59, s59, 5
        s_add_u32 s59, s59, s60
        s_lshl_b32 s59, s59, 10
        s_add_u32 s{S + 4 + q}, s59, s89
        ''')
    e(f's_branch {LD}')
    e.label(LW1A)
    e(f's_sub_u32 s57, {sU}, {U_W1A}')
    divmod_s(e, 's58', 's59', 's57', 24, 384)
    e(f'''
    s_lshr_b32 s60, s58, 1             ; cs
    s_and_b32 s58, s58, 1              ; hf
    v_lshl_add_u32 v7, v6, 4, v5
    s_mul_i32 s84, s60, 80
    s_lshl_b32 s63, s58, 5
    s_add_u32 s84, s84, s63
    s_mov_b32 s85, 0
    s_mov_b32 s86, 4
    s_mov_b32 s87, 8
    s_mov_b32 s88, 12
    s_lshl_b32 s82, s59, 7
    s_mov_b32 s83, s82
    s_mul_i32 s89, s60, 5
    s_lshl_b32 s63, s58, 1
    s_add_u32 s89, s89, s63
    s_add_u32 s91, s89, 1
    s_lshl_b32 s61, s59, 1
    s_mov_b32 s62, s61
    s_branch {L32}
    ''')
    e.label(LW1B)
    e(f's_sub_u32 s57, {sU}, {U_W1B}')
    divmod_s(e, 's60', 's59', 's57', 12, 96)
    e(f'''
    v_mov_b32 v7, v3
    s_mul_i32 s84, s60, 80
    s_add_u32 s84, s84, 64
    s_mov_b32 s85, 0
    s_mov_b32 s86, 8
    s_mov_b32 s87, 0
    s_mov_b32 s88, 8
    s_lshl_b32 s82, s59, 8
    s_add_u32 s83, s82, 128
    s_mul_i32 s89, s60, 5
    s_add_u32 s89, s89, 4
    s_mov_b32 s91, s89
    s_lshl_b32 s61, s59, 2
    s_add_u32 s62, s61, 2
    ''')
    e.label(L32)
    srdcopy(S_W1)
    e(f'''
    v_mul_u32_u24 v7, 3072, v7
    v_lshl_add_u32 v7, v4, 4, v7
    ''')
    for u in range(4):
        col = 's82' if u < 2 else 's83'
        e(f'''
        s_add_u32 s57, s84, s{85 + u}
        s_mul_i32 s57, s57, 3072
        s_add_u32 s57, s57, {col}
        v_add_u32 v{V + u}, s57, v7
        ''')
    e(f'''
    v_lshrrev_b32 v8, 5, v1            ; h
    v_bfe_u32 v9, v1, 2, 2             ; r
    v_lshl_add_u32 v8, v8, 3, v9
    v_lshlrev_b32 v8, 7, v8
    v_bfe_u32 v9, v1, 4, 1
    v_lshl_add_u32 v8, v9, 5, v8
    v_and_b32 v9, 3, v1
    v_lshl_add_u32 v8, v9, 3, v8
    v_add_u32 v8, s81, v8
    ''')
    for sg in range(2):
        for q in range(2):
            k = 2 * sg + q
            ft = 's61' if sg == 0 else 's62'
            st = 's89' if sg == 0 else 's91'
            e(f'''
            v_add_u32 v{V + 4 + k}, {2048 * sg + 64 * q}, v8
            s_add_u32 s57, {ft}, {q}
            s_mul_i32 s57, s57, 40
            s_add_u32 s57, s57, {st}
            s_lshl_b32 s57, s57, 10
            s_add_u32 s{S + 4 + k}, s57, {WS_W1F}
            ''')
    e(f's_branch {LD}')
    e.label(LNONE)
    srdcopy(S_W1)
    for u in range(4):
        e(f'''
        v_mov_b32 v{V + u}, 0xf0000000
        v_add_u32 v{V + 4 + u}, s81, v2
        s_mov_b32 s{S + 4 + u}, 0x7ffff000
        ''')
    e.label(LD)


def relayout_issue_list(rnd, wave_stage_sgpr):
    V = RL_V + 8 * rnd
    S = RL_S + 8 * rnd
    out = []
    for u in range(4):
        out.append(f's_add_u32 m0, {wave_stage_sgpr}, {RL_STAGE + 16384 * rnd + 1024 * u}')
        out.append(f'buffer_load_dwordx4 v{V + u}, s[{S}:{S + 3}], 0 offen lds')
    return out


def relayout_read_list(rnd, R):
    V = RL_V + 8 * rnd
    out = []
    for k in range(4):
        out.append(f'ds_read_b64_tr_b16 {v2(R + 4 * k)}, v{V + 4 + k}')
        out.append(f'ds_read_b64_tr_b16 {v2(R + 4 * k + 2)}, v{V + 4 + k} offset:512')
    return out


def relayout_store_list(rnd, R):
    S = RL_S + 8 * rnd
    return [f'buffer_store_dwordx4 {v4(R + 4 * k)}, v2, {srd(S_WS)}, s{S + 4 + k} offen sc1' for k in range(4)]


def second_unit_branch(e, label):
    e(f'''
    s_lshl_b32 s57, {sB}, 2
    s_add_u32 s57, s57, {sW}
    s_cmp_ge_u32 s57, {U_END - 1024}
    s_cbranch_scc1 {label}
    ''')


def publish_flag(e, base, idx_sgpr, shift=7):
    lbl = e.new_label('PF')
    e(f'''
    s_cmp_lg_u32 {sW}, 0
    s_cbranch_scc1 {lbl}
    s_lshl_b32 s57, {idx_sgpr}, {shift}
    s_add_u32 s57, s57, {base}
    v_mov_b32 v3, {sTAG}
    v_mov_b32 v4, 0
    s_mov_b64 exec, 1
    ''')
    e.raw(f'buffer_store_dword v3, v4, {srd(S_WS)}, s57 offen sc1')
    e.raw('s_nop 1')
    e('s_mov_b64 exec, -1')
    e.label(lbl)


SPIN_MAX = 400000


def poll_loop(e, voff, nregs):
    lp = e.new_label('POLL')
    dn = e.new_label('POLLD')
    e('s_mov_b32 s57, 0')
    e.label(lp)
    for k in range(nregs):
        e.raw(f'buffer_load_dword v{voff + nregs + k}, v{voff + k}, {srd(S_WS)}, 0 offen sc1')
    e.raw('s_waitcnt vmcnt(0)')
    e.raw(f'v_cmp_ne_u32 vcc, {sTAG}, v{voff + nregs}')
    for k in range(1, nregs):
        e.raw(f'v_cmp_ne_u32 s[58:59], {sTAG}, v{voff + nregs + k}')
        e.raw('s_nop 0')
        e.raw('s_or_b64 vcc, vcc, s[58:59]')
    e.raw('s_add_u32 s57, s57, 1')
    e.raw(f's_cmp_gt_u32 s57, {SPIN_MAX}')
    e.raw(f's_cbranch_scc1 {dn}')
    e.raw(f's_cbranch_vccnz {lp}')
    e.label(dn)


def poll_flags(e, voff, nregs=1):
    sk = e.new_label('POLLS')
    e(f'''
    s_cmp_lg_u32 {sW}, 0
    s_cbranch_scc1 {sk}
    ''')
    poll_loop(e, voff, nregs)
    e.label(sk)
    e('s_barrier')
```

```python
from common import *
from p0 import *

NSLOT = 9
MV = LDS_MISC
QSCALE = LOG2E / (20 ** 0.5)


def bf16_round4(e, R):
    for h in range(2):
        e(f'v_cvt_pk_bf16_f32 v{R + 4 + h}, v{R + 2 * h}, v{R + 2 * h + 1}')
    for h in range(2):
        e(f'v_lshlrev_b32 v{R + 2 * h}, 16, v{R + 4 + h}')
        e(f'v_and_b32 v{R + 2 * h + 1}, 0xffff0000, v{R + 4 + h}')


def sum4(e, R):
    for h in range(2):
        e(f'v_pk_add_f32 {v2(R + 2 * h)}, {v2(R + 2 * h)}, {v2(R + 4 + 2 * h)}')
        e(f'v_pk_add_f32 {v2(R + 8 + 2 * h)}, {v2(R + 8 + 2 * h)}, {v2(R + 12 + 2 * h)}')
    for h in range(2):
        e(f'v_pk_add_f32 {v2(R + 2 * h)}, {v2(R + 2 * h)}, {v2(R + 8 + 2 * h)}')


def sync_a(e):
    e(f'''
    s_lshl_b32 s57, {sI}, 5
    v_add_u32 v3, s57, v1
    v_lshlrev_b32 v3, 7, v3
    v_add_u32 v3, {FL_XN}, v3
    v_subrev_u32 v4, 32, v1
    v_lshlrev_b32 v4, 7, v4
    v_add_u32 v4, {FL_MOD}, v4
    v_cmp_gt_u32 vcc, 32, v1
    v_cndmask_b32 v8, v4, v3, vcc
    v_add_u32 v4, 32, v1
    v_min_u32 v4, 79, v4
    v_lshlrev_b32 v4, 7, v4
    v_add_u32 v9, {FL_MOD}, v4
    ''')
    poll_flags(e, 8, 2)


def publish_p1(e):
    lbl = e.new_label('PF')
    e(f'''
    s_cmp_lg_u32 {sW}, 0
    s_cbranch_scc1 {lbl}
    s_lshl_b32 s57, {sI}, 4
    s_add_u32 s57, s57, {sJ}
    s_lshl_b32 s57, s57, 7
    s_add_u32 s57, s57, {FL_QKV}
    s_lshl_b32 s58, {sB}, 2
    s_add_u32 s58, s58, {FL_REL}
    v_mov_b32 v3, {sTAG}
    v_mov_b32 v4, 0
    s_mov_b64 exec, 1
    ''')
    e.raw(f'buffer_store_dword v3, v4, {srd(S_WS)}, s57 offen sc1')
    e.raw(f'buffer_store_dword v3, v4, {srd(S_WS)}, s58 offen sc1')
    e.raw('s_nop 1')
    e('s_mov_b64 exec, -1')
    e.label(lbl)
    e.maybe_vm(2)


def p1_tile(e):
    NR = 12
    XB = 16
    ACC = 64
    GS = [128, 144]
    WA = [160, 176]
    RLR = 192
    T = 224
    vTA = [228, 229, 230, 231]
    vG, vD = 232, 233
    R0, R1 = 128, 144
    e(f'''
    v_lshrrev_b32 v8, 5, v1            ; h
    v_bfe_u32 v9, v1, 2, 2             ; r
    v_lshl_add_u32 v5, v8, 3, v9       ; 8h + r
    v_lshlrev_b32 v5, 8, v5            ; row*256
    v_and_b32 v6, 1, v1
    v_lshl_add_u32 v5, v6, 3, v5       ; + sub*8
    v_bfe_u32 v6, v1, 4, 1             ; nhalf
    v_bfe_u32 v7, v1, 1, 1             ; cpiece>>1
    v_lshl_add_u32 v6, v6, 1, v7
    v_lshl_add_u32 v6, v9, 2, v6
    ''')
    for tau in range(4):
        e(f'''
        v_add_u32 v7, {4 * tau}, v6
        v_and_b32 v7, 15, v7
        v_lshl_add_u32 v{vTA[tau]}, v7, 4, v5
        ''')
    e(f'''
    v_lshlrev_b32 v{vG}, 5, v8
    v_add_u32 v{vG}, {MV}, v{vG}
    s_cmp_lt_u32 {sJ}, 5
    s_cselect_b32 s62, {hexf(QSCALE)}, 1.0
    s_mov_b32 s63, s62
    s_lshl_b32 s96, {sJ}, 8
    s_mul_i32 s58, {sW}, {16 * 3840}
    s_add_u32 s96, s96, s58
    s_lshl_b32 s97, {sW}, 12
    s_lshl_b32 s98, {sI}, 2
    s_add_u32 s98, s98, {sW}
    s_mul_i32 s98, s98, 40960
    s_add_u32 s98, s98, {WS_XN}
    ''')
    wq_dma_addr(e, vD)
    e(f'''
    v_lshlrev_b32 v12, 4, v0
    v_add_u32 v13, 4096, v12
    v_cmp_le_u32 vcc, 160, v0
    v_cndmask_b32 v14, 0, 1.0, vcc
    ''')
    sync_a(e)
    e.ts(2)
    for p in range(4):
        e(f's_mov_b32 s57, {WS_MODP + p * 15360}')
        e(f'buffer_load_dwordx4 {v4(R0 + 4 * p)}, v12, {srd(S_WS)}, s57 offen sc1')
    LA, LB = e.new_label('MVA'), e.new_label('MVB')
    e(f's_cmp_lg_u32 {sW}, 0\n s_cbranch_scc1 {LA}')
    for p in range(4):
        e.raw(f's_mov_b32 s57, {WS_MODP + p * 15360}')
        e.raw(f'buffer_load_dwordx4 {v4(R1 + 4 * p)}, v13, {srd(S_WS)}, s57 offen sc1')
    e.label(LA)
    e.maybe_vm(4)

    def xload(s):
        out = []
        if s and s % 4 == 0:
            out.append('s_add_u32 s98, s98, 4096')
        out.append(f'buffer_load_dwordx4 {v4(XB + 4 * (s % NR))}, v2, {srd(S_WS)}, s98 offen offset:{(s % 4) * 1024} sc1')
        return out
    for s in range(6):
        for x in xload(s):
            e(x)
    sum4(e, R0)
    bf16_round4(e, R0)
    for k in range(4):
        e(f'v_add_f32 v{R0 + k}, v14, v{R0 + k}')
    bf16_round4(e, R0)
    for h in range(2):
        e(f'v_pk_mul_f32 {v2(R0 + 2 * h)}, {v2(R0 + 2 * h)}, s[62:63]')
    e(f'''
    v_add_u32 v12, {MV}, v12
    v_add_u32 v13, {MV}, v13
    ds_write_b128 v12, {v4(R0)}
    s_cmp_lg_u32 {sW}, 0
    s_cbranch_scc1 {LB}
    ''')
    sub = []
    e2 = e
    save = (dict(e.pend),)
    sum4(e, R1)
    bf16_round4(e, R1)
    for k in range(4):
        e(f'v_add_f32 v{R1 + k}, 1.0, v{R1 + k}')
    bf16_round4(e, R1)
    for h in range(2):
        e(f'v_pk_mul_f32 {v2(R1 + 2 * h)}, {v2(R1 + 2 * h)}, s[62:63]')
    e.raw(f'ds_write_b128 v13, {v4(R1)}')
    e.label(LB)
    for s in range(6, NR):
        for x in xload(s):
            e(x)
    e.force_wait(lg=0)
    e('s_barrier')
    e.ts(9)

    def tr_reads(s):
        out = []
        q, sl = s >> 2, s & 3
        slot = q % NSLOT
        for tau in range(4):
            for ee in range(2):
                off = (slot * 16384) % 65536 + (16 * sl + 4 * ee) * 256
                out.append(f'ds_read_b64_tr_b16 {v2(WA[s & 1] + 4 * tau + 2 * ee)}, v{vTA[tau]} offset:{off}')
        return out

    def addr_fix(s):
        q = s >> 2
        if s & 3 or s == 0:
            return []
        slot, prev = q % NSLOT, (q - 1) % NSLOT
        d = (slot * 16384) // 65536 - (prev * 16384) // 65536
        if d == 0:
            return []
        return [f'v_add_u32 v{vTA[t]}, {hex((d * 65536) & 0xffffffff)}, v{vTA[t]}' for t in range(4)]

    def gs_reads(s):
        b = GS[s & 1]
        return [f'ds_read_b128 {v4(b)}, v{vG} offset:{2560 + 64 * s}',
                f'ds_read_b128 {v4(b + 8)}, v{vG} offset:{64 * s}',
                f'ds_read_b128 {v4(b + 4)}, v{vG} offset:{2560 + 64 * s + 16}',
                f'ds_read_b128 {v4(b + 12)}, v{vG} offset:{64 * s + 16}']

    def modulate(s):
        b = GS[s & 1]
        out = []
        for d in range(4):
            x = XB + 4 * (s % NR) + d
            t = T + 2 * (d & 1)
            out.append(f'v_fma_mix_f32 v{t}, v{x}, v{b + 2 * d}, v{b + 8 + 2 * d} op_sel:[0,0,0] op_sel_hi:[1,0,0]')
            out.append(f'v_fma_mix_f32 v{t + 1}, v{x}, v{b + 2 * d + 1}, v{b + 8 + 2 * d + 1} op_sel:[1,0,0] op_sel_hi:[1,0,0]')
            out.append(f'v_cvt_pk_bf16_f32 v{x}, v{t}, v{t + 1}')
        return out

    for x in gs_reads(0) + tr_reads(0) + gs_reads(1) + modulate(0):
        e(x)
    extra = {}
    for s in range(40):
        tr = (addr_fix(s + 1) + tr_reads(s + 1)) if s + 1 < 40 else []
        mod = modulate(s + 1) if s + 1 < 40 else []
        gs = gs_reads(s + 2) if s + 2 < 40 else []
        seq = tr[:4] + mod[:3] + tr[4:] + mod[3:6] + gs[:2] + mod[6:9] + gs[2:] + mod[9:] + extra.pop(s, [])
        per = (len(seq) + 3) // 4
        for tau in range(4):
            c = '0' if s == 0 else vr(ACC + 16 * tau, 16)
            e(f'v_mfma_f32_32x32x16_bf16 {vr(ACC + 16 * tau, 16)}, {v4(WA[s & 1] + 4 * tau)}, {v4(XB + 4 * (s % NR))}, {c}')
            for x in seq[tau * per:(tau + 1) * per]:
                e(x)
        if s + NR < 40:
            for x in xload(s + NR):
                e(x)
        if s in (1, 9, 19, 29):
            e.ts(32 + (s + 1) // 10)
        if s == 3:
            e.wait(lg=0)
            e('s_barrier')
            for u in range(4):
                e(f's_add_u32 m0, s97, {u * 1024}')
                e(f's_add_u32 s57, s96, {(64 * 9 + 4 * u) * 3840}')
                e(f'buffer_load_dwordx4 v{vD}, {srd(S_WQKV)}, s57 offen lds')
            tok9 = e.vm_token()
        if s == 12:
            e.wait(lg=0)
            e('s_barrier')
            extra[13] = relayout_issue_list(0, 's97')
        if s == 15:
            lbl = e.new_label('RL1')
            second_unit_branch(e, lbl)
            for x in relayout_issue_list(1, 's97'):
                i = e.raw(x)
                if x.startswith('s_add_u32 m0'):
                    e.raw('s_nop 0').ws = 0
                i.ws = 0
            e.label(lbl)
            e.maybe_vm(4)
        if s == 28:
            extra[29] = relayout_read_list(0, RLR)
            extra[31] = relayout_store_list(0, RLR)
        if s == 33:
            lbl = e.new_label('RL2')
            second_unit_branch(e, lbl)
            for x in relayout_read_list(1, RLR):
                e.raw(x).ws = 0
            e.raw('s_waitcnt lgkmcnt(0)').ws = 0
            for x in relayout_store_list(1, RLR):
                e.raw(x).ws = 0
            e.label(lbl)
            e.maybe_vm(4)
            e.force_wait(lg=0)
        if s == 34:
            e.wait_vm_tok(tok9)
            e('s_barrier')
    e.ts(10)
    e(f'''
    s_lshl_b32 s57, {sJ}, 19           ; quad m0 = 8c ; *65536
    s_lshl_b32 s62, {sI}, 7
    s_lshl_b32 s63, {sW}, 5
    s_add_u32 s62, s62, s63
    s_lshl_b32 s62, s62, 4
    s_add_u32 s57, s57, s62
    s_add_u32 s57, s57, {WS_QKV}
    v_lshrrev_b32 v3, 5, v1
    v_lshlrev_b32 v3, 15, v3
    v_and_b32 v4, 31, v1
    v_lshl_add_u32 v3, v4, 4, v3
    ''')
    for tau in range(4):
        for e2 in range(2):
            R = 16 + 4 * (2 * tau + e2)
            A = ACC + 16 * tau + 8 * e2
            for k in range(4):
                e(f'v_cvt_pk_bf16_f32 v{R + k}, v{A + 2 * k}, v{A + 2 * k + 1}')
            e(f'buffer_store_dwordx4 {v4(R)}, v3, {srd(S_WS)}, s57 offen sc1')
            e('s_add_u32 s57, s57, 65536')
    e.force_wait(vm=0, lg=0)
    e('s_barrier')
    publish_p1(e)


def p1_all(e):
    for rnd in range(2):
        relayout_setup(e, rnd)
    e.ts(1)
    LSK, LD = e.new_label('P1SK'), e.new_label('P1D')
    e(f's_cmp_eq_u32 {sJ}, 15\n s_cbranch_scc1 {LSK}')
    p1_tile(e)
    e(f's_branch {LD}')
    e.label(LSK)
    e.assume_settled(14)
    e(f's_lshl_b32 s97, {sW}, 12')
    for rnd in range(2):
        for x in relayout_issue_list(rnd, 's97'):
            e(x)
    e.force_wait(vm=0)
    for rnd in range(2):
        for x in relayout_read_list(rnd, 16 + 16 * rnd):
            e(x)
    for rnd in range(2):
        for x in relayout_store_list(rnd, 16 + 16 * rnd):
            e(x)
    e.force_wait(vm=0, lg=0)
    e('s_barrier')
    publish_p1(e)
    e.label(LD)
    e.assume_settled(2)
```

```python
from common import *
from p0 import *
from emit import Ins

KB = 0
KS = 6144
VB = 36864
VS = 6208
OB = VB + 6 * VS + 64
NEG = -1.0e30

SB = 16
QF = 160
QM = 172
KF = 188
VF = 204
MK = 220
OA = 228
vK, vVA, vVB, vY = 244, 245, 246, 247
vM, vT0, vT1, vT2 = 248, 249, 250, 251
OUTA = 0


def p2_setup_and_sync(e):
    e(f'''
    s_mul_i32 s60, {sJ}, 5
    s_lshr_b32 s60, s60, 1             ; m0
    s_and_b32 s61, {sJ}, 1
    s_lshl_b32 s61, s61, 1             ; o
    s_lshr_b32 s62, s60, 3             ; c_lo
    s_add_u32 s63, s60, 2
    s_lshr_b32 s63, s63, 3             ; c_hi
    ''')
    e(f'''
    v_and_b32 v3, 15, v1
    v_lshrrev_b32 v4, 2, v3
    v_and_b32 v5, 1, v3
    v_mov_b32 v6, s62
    v_mov_b32 v7, s63
    v_cmp_eq_u32 vcc, 1, v5
    v_cndmask_b32 v6, v6, v7, vcc
    v_bfe_u32 v5, v3, 1, 1
    v_mul_u32_u24 v5, 5, v5
    v_add_u32 v5, 5, v5                ; 5 or 10
    v_cmp_eq_u32 vcc, 3, v4
    v_cndmask_b32 v5, v5, 0, vcc
    v_cndmask_b32 v4, v4, 0, vcc
    v_add_u32 v6, v6, v5               ; tile
    v_sub_u32 v7, {sI}, v4
    v_max_i32 v7, 0, v7
    v_lshl_add_u32 v7, v7, 4, v6
    v_lshlrev_b32 v8, 7, v7
    v_add_u32 v8, {FL_QKV}, v8
    ''')
    poll_flags(e, 8, 1)


def p2_loads(e):
    e(f'''
    v_mov_b32 v8, 0x3f80
    v_mov_b32 v9, 0
    v_mov_b32 v10, 0
    v_mov_b32 v11, 0
    v_lshlrev_b32 v3, 4, v0
    v_add_u32 v3, {OB}, v3
    ds_write_b128 v3, v[8:11]
    v_and_b32 v4, 127, v0
    v_lshlrev_b32 v4, 4, v4
    v_add_u32 v4, {OB + 4096}, v4
    ds_write_b128 v4, v[8:11]
    ''')
    e(f'''
    s_lshl_b32 s57, {sI}, 7
    s_lshl_b32 s58, {sW}, 5
    s_add_u32 s57, s57, s58
    s_lshl_b32 s57, s57, 4
    s_lshl_b32 s58, s60, 16
    s_add_u32 s57, s57, s58
    s_add_u32 s57, s57, {WS_QKV}
    v_lshrrev_b32 v3, 5, v1            ; h
    v_and_b32 v4, 31, v1               ; t
    v_lshlrev_b32 v5, 15, v3
    v_lshl_add_u32 v5, v4, 4, v5
    ''')
    for f in range(3):
        e(f'buffer_load_dwordx4 {v4(QF + 4 * f)}, v5, {srd(S_WS)}, s57 offen sc1')
        if f < 2:
            e('s_add_u32 s57, s57, 65536')
    L3, LJ = e.new_label('KV3'), e.new_label('KVJ')
    e(f'''
    s_cmp_eq_u32 {sW}, 3
    s_cbranch_scc1 {L3}
    s_add_u32 s57, {sI}, {sW}
    s_cmp_ge_u32 s57, 2
    s_cselect_b32 s58, 0, 0xf0000000
    v_or_b32 v12, s58, v2
    s_add_u32 s62, s60, 40
    s_lshl_b32 s62, s62, 16             ; quad (40+m0) * 65536
    s_lshl_b32 s63, s57, 11             ; 128*(i+w)*16
    s_add_u32 s62, s62, s63
    s_add_u32 s62, s62, {WS_QKV - 4096}
    s_lshl_b32 s63, {sW}, 11
    ''')
    for sec in range(2):
        for row in range(6):
            for hf in range(2):
                lds = (KB + row * KS if sec == 0 else VB + row * VS) + hf * 1024
                src = sec * 40 * 65536 + row * 32768 + hf * 1024
                e(f'''
                s_add_u32 m0, s63, {lds}
                s_add_u32 s57, s62, {src}
                buffer_load_dwordx4 v12, {srd(S_WS)}, s57 offen sc1 lds
                ''')
    e.force_wait(vm=12)
    e(f's_branch {LJ}')
    e.label(L3)
    e(f'v_lshlrev_b32 v4, 2, v1\n v_add_u32 v4, {FL_REL}, v4\n v_add_u32 v5, 256, v4\n v_add_u32 v6, 512, v4\n v_add_u32 v7, 768, v4')
    poll_loop(e, 4, 4)
    e.label(LJ)
    e.assume_settled(12)
    e.join_vm = e.vm_n


def p2_lane_setup(e):
    e(f'''
    v_lshrrev_b32 v3, 5, v1
    v_and_b32 v4, 31, v1
    s_lshl_b32 s57, {sW}, 5
    v_mul_u32_u24 v5, {KS}, v3
    v_add_u32 v6, s57, v4
    v_lshl_add_u32 v{vK}, v6, 4, v5
    v_add_u32 v{vK}, {KB}, v{vK}
    v_lshlrev_b32 v5, 2, v3
    v_sub_u32 v{vY}, v4, v5            ; t_q - 4h
    ''')
    for r in range(16):
        c = (r & 3) + 8 * (r >> 2)
        e(f'v_cmp_le_i32 s[{64 + 2 * r}:{65 + 2 * r}], {c}, v{vY}')
    for d in range(8):
        e(f'''
        v_mov_b32 v8, 0xffff
        v_mov_b32 v9, 0xffff0000
        v_cndmask_b32 v8, 0, v8, s[{64 + 4 * d}:{65 + 4 * d}]
        v_cndmask_b32 v9, 0, v9, s[{66 + 4 * d}:{67 + 4 * d}]
        v_or_b32 v{MK + d}, v8, v9
        ''')
    e(f'''
    v_bfe_u32 v5, v1, 2, 2             ; r
    v_lshl_add_u32 v5, v3, 2, v5       ; 4h + r
    v_add_u32 v5, s57, v5              ; + 32w
    v_lshlrev_b32 v5, 4, v5            ; key*16
    v_bfe_u32 v6, v1, 4, 1
    v_and_b32 v7, 3, v1
    v_lshl_add_u32 v6, v6, 2, v7       ; pp
    ''')
    for X, reg in ((0, vVA), (1, vVB)):
        e(f'''
        v_add_u32 v7, s61, v6
        v_add_u32 v7, {5 * X}, v7       ; p
        v_lshrrev_b32 v8, 2, v7
        v_lshlrev_b32 v8, 1, v8
        v_and_b32 v9, 1, v7
        v_add_u32 v8, v8, v9            ; row
        v_mul_u32_u24 v8, {VS}, v8
        v_bfe_u32 v9, v7, 1, 1
        v_lshl_add_u32 v8, v9, 3, v8
        v_add_u32 v8, {VB}, v8
        v_bfe_u32 v9, v6, 1, 1
        v_lshlrev_b32 v9, 3, v9
        v_add_u32 v9, {OB}, v9
        v_cmp_le_u32 vcc, 5, v6
        v_cndmask_b32 v8, v8, v9, vcc
        v_add_u32 v{reg}, v8, v5
        ''')
    e(f'v_subrev_u32 v5, s61, v3')
    for idx, (f, X) in enumerate(((0, 0), (1, 0), (1, 1), (2, 1))):
        for hi in range(2):
            e(f'''
            v_add_u32 v6, {(4 * f + 2 * hi - 5 * X) & 0xffffffff}, v5
            v_cmp_gt_u32 vcc, 5, v6
            v_cndmask_b32 v{QM + 4 * idx + 2 * hi}, 0, v{QF + 4 * f + 2 * hi}, vcc
            v_cndmask_b32 v{QM + 4 * idx + 2 * hi + 1}, 0, v{QF + 4 * f + 2 * hi + 1}, vcc
            ''')


def pad_for(e, text):
    n = e._need_nops(Ins(text))
    if n > 0:
        e.raw(f's_nop {n - 1}')


def head(e, X, groups, before_pv=None):
    vV = vVA if X == 0 else vVB
    Qa, Qb = QM + 8 * X, QM + 8 * X + 4

    def kreads(jb):
        b = KF + 8 * (jb & 1)
        return [f'ds_read_b128 {v4(b)}, v{vK} offset:{2 * X * KS + jb * 512}',
                f'ds_read_b128 {v4(b + 4)}, v{vK} offset:{2 * (X + 1) * KS + jb * 512}']

    def fixup(jb):
        lbl, back = e.new_label('FX'), e.new_label('FXB')
        pad_for(e, f'v_mov_b32 v{SB + 16 * jb + 15}, 0')
        e(f's_cmp_gt_i32 s58, {jb}\n s_cbranch_scc1 {lbl}')
        e.label(back)
        e.cold.append(lbl + ':')
        for r in range(16):
            e.cold.append(f'    v_mov_b32 v{SB + 16 * jb + r}, {hexf(NEG)}')
        e.cold.append(f'    s_branch {back}')

    state = {'n': 0}

    def maxops(base):
        out = []
        regs = list(range(base, base + 16))
        if state['n'] == 0:
            out.append(f'v_max3_f32 v{vM}, v{regs[0]}, v{regs[1]}, v{regs[2]}')
            out.append(f'v_max3_f32 v{vT0}, v{regs[3]}, v{regs[4]}, v{regs[5]}')
            rest = regs[6:]
        else:
            rest = regs
        for k in range(0, len(rest), 2):
            d = vM if (k // 2) % 2 == 0 else vT0
            out.append(f'v_max3_f32 v{d}, v{rest[k]}, v{rest[k + 1]}, v{d}')
        state['n'] += 1
        return out
    e(f'''
    s_lshl_b32 s57, {sI}, 2
    s_add_u32 s57, s57, {sW}           ; qb
    s_sub_i32 s58, 8, s57
    ''')
    qorder = [0, 8, 1, 2, 3, 4, 5, 6, 7]
    kb = {jb: n % 4 for n, jb in enumerate(qorder)}

    def kr(jb):
        b = KF + 8 * kb[jb]
        return [f'ds_read_b128 {v4(b)}, v{vK} offset:{2 * X * KS + jb * 512}',
                f'ds_read_b128 {v4(b + 4)}, v{vK} offset:{2 * (X + 1) * KS + jb * 512}']
    for n in range(3):
        for x in kr(qorder[n]):
            e(x)
    M = SB + 128
    for n, jb in enumerate(qorder):
        b = KF + 8 * kb[jb]
        S = vr(SB + 16 * jb, 16)
        work = []
        if n >= 2:
            p = qorder[n - 2]
            if p == 0:
                fixup(0)
            elif p == 8:
                work = [f'v_cndmask_b32 v{M + r}, v{SB + r}, v{M + r}, s[{64 + 2 * r}:{65 + 2 * r}]' for r in range(16)] + maxops(M)
            else:
                fixup(p)
                work = maxops(SB + 16 * p)
        rd = kr(qorder[n + 3]) if n + 3 < 9 else []
        h = (len(work) + 1) // 2
        e(f'v_mfma_f32_32x32x16_bf16 {S}, {v4(b)}, {v4(Qa)}, 0')
        for x in work[:h]:
            e(x)
        e(f'v_mfma_f32_32x32x16_bf16 {S}, {v4(b + 4)}, {v4(Qb)}, {S}')
        for x in rd + work[h:]:
            e(x)
    for p in qorder[-2:]:
        fixup(p)
        for x in maxops(SB + 16 * p):
            e(x)
    e(f'v_max_f32 v{vM}, v{vM}, v{vT0}')
    e(f'v_mov_b32 v{vT0}, v{vM}')
    e(f'v_permlane32_swap_b32 v{vM}, v{vT0}')
    e(f'v_max_f32 v{vM}, v{vM}, v{vT0}')
    e.ts(36 + 2 * X)
    if before_pv is not None:
        before_pv()
    e.ts(37 + 2 * X)

    def probs(base):
        sub = [f'v_pk_add_f32 {v2(base + 2 * k)}, {v2(base + 2 * k)}, {v2(vM)} op_sel_hi:[1,0] neg_lo:[0,1] neg_hi:[0,1]' for k in range(8)]
        ex = [f'v_exp_f32 v{base + k}, v{base + k}' for k in range(16)]
        cv = [f'v_cvt_pk_bf16_f32 v{base + k}, v{base + 2 * k}, v{base + 2 * k + 1}' for k in range(8)]
        out = sub + ['M0'] + ex[0:4] + ['G', cv[0]] + ex[4:6] + [cv[1], 'R'] + ex[6:8] + [cv[2], 'M1'] + ex[8:12] + \
            ['R', cv[3], 'G'] + ex[12:14] + [cv[4], 'R', 'G'] + ex[14:16] + [cv[5], 'R', 'G', cv[6], cv[7]]
        return out
    order = [1, 2, 3, 4, 5, 6, 7, 8, 0]
    bufidx = {jb: n & 1 for n, jb in enumerate(order)}
    O = vr(OA, 16)

    def vreads(jb):
        b = VF + 8 * bufidx[jb]
        return [f'ds_read_b64_tr_b16 {v2(b + 4 * sg + 2 * ee)}, v{vV} offset:{jb * 512 + sg * 256 + ee * 128}'
                for sg in range(2) for ee in range(2)]

    def pv(jb, first):
        b = VF + 8 * bufidx[jb]
        base = SB + 16 * jb
        return [f'v_mfma_f32_32x32x16_bf16 {O}, {v4(b + 4 * sg)}, {v4(base + 4 * sg)}, {"0" if (first and sg == 0) else O}' for sg in range(2)]
    for x in vreads(order[0]):
        e(x)
    prev = None
    for n, jb in enumerate(order):
        base = SB + 16 * jb
        if jb == 0:
            work = []
        else:
            work = probs(base)
            if jb == 8:
                work += [f'v_bfi_b32 v{SB + d}, v{MK + d}, 0, v{base + d}' for d in range(8)]
                work += [f'v_and_b32 v{base + d}, v{MK + d}, v{base + d}' for d in range(8)]
        ins = pv(prev, prev == order[0]) if prev is not None else []
        rd = vreads(order[n + 1]) if n + 1 < len(order) else []
        import os
        npf = int(os.environ.get('NPF', 4))
        if work:
            ng = 0
            m1_done = False
            held = []
            for x in work:
                if x == 'M0':
                    if ins:
                        e(ins[0])
                elif x == 'M1':
                    if ins:
                        e(ins[1])
                    m1_done = True
                    for y in held:
                        e(y)
                    held = []
                elif x == 'R':
                    if rd:
                        y = rd.pop(0)
                        if m1_done:
                            e(y)
                        else:
                            held.append(y)
                elif x == 'G':
                    if groups and ng < npf:
                        for y in groups.pop(0):
                            e(y)
                        ng += 1
                else:
                    e(x)
            for y in rd:
                e(y)
        else:
            for x in ins + rd:
                e(x)
        prev = jb
    for x in pv(prev, False):
        e(x)
    e(f'v_mov_b32 v{vT0}, v{OA + 8}')
    e(f'v_mov_b32 v{vT1}, v{OA + 8}')
    e(f'v_permlane32_swap_b32 v{vT0}, v{vT1}')
    e(f'v_rcp_f32 v{vT1}, v{vT1}')
    for k in range(6):
        e(f'v_pk_mul_f32 {v2(OA + 2 * k)}, {v2(OA + 2 * k)}, {v2(vT1)} op_sel_hi:[1,0]')


def p2_all(e):
    p2_setup_and_sync(e)
    e.ts(11)
    p2_loads(e)
    p2_lane_setup(e)
    e.force_wait(lg=0)
    e('s_barrier')
    e.ts(12)
    e(f'''
    s_lshl_b32 s62, {sI}, 3
    s_lshl_b32 s63, {sW}, 1
    s_add_u32 s62, s62, s63
    s_mul_i32 s62, s62, 20480
    s_add_u32 s62, s62, {WS_OF}
    s_lshl_b32 s63, {sJ}, 10
    s_add_u32 s96, s62, s63
    s_lshr_b32 s63, {sJ}, 2
    s_add_u32 s63, s63, 16
    s_lshl_b32 s63, s63, 10
    s_add_u32 s97, s62, s63
    s_and_b32 s63, {sJ}, 3
    s_lshl_b32 s63, s63, 8
    s_add_u32 s97, s97, s63
    v_bfe_u32 v3, v1, 4, 1
    v_mul_u32_u24 v3, 20480, v3
    v_and_b32 v4, 15, v1
    v_lshl_add_u32 v3, v4, 4, v3
    v_lshrrev_b32 v4, 5, v1
    v_lshl_add_u32 v252, v4, 8, v3     ; main: + h*256
    v_mov_b32 v5, 0xf0000000
    v_cmp_eq_u32 vcc, 0, v4
    v_cndmask_b32 v253, v5, v3, vcc
    ''')
    from p3 import p3_prefetch
    extra = p3_prefetch(e)
    groups, cur = [], []
    for x in extra:
        cur.append(x)
        if x.startswith('buffer'):
            groups.append(cur)
            cur = []

    def v_ready():
        e.force_wait(vm=min(63, e.vm_n - e.join_vm))
        e('s_barrier')
    for X in range(2):
        head(e, X, groups, v_ready if X == 0 else None)
        e.ts(40 + X)
        for k in range(4):
            e(f'v_cvt_pk_bf16_f32 v{8 + k}, v{OA + 2 * k}, v{OA + 2 * k + 1}')
        e(f'v_cvt_pk_bf16_f32 v{12 + 2 * X}, v{OA + 8}, v{OA + 9}')
        e(f'v_cvt_pk_bf16_f32 v{13 + 2 * X}, v{OA + 10}, v{OA + 11}')
        e(f'buffer_store_dwordx4 v[8:11], v252, {srd(S_WS)}, s96 offen offset:{512 * X} sc1')
    e(f'buffer_store_dwordx4 v[12:15], v253, {srd(S_WS)}, s97 offen sc1')
    tok = e.vm_token()
    e.ts(13)
    for g in groups:
        for x in g:
            e(x)
    e.wait_vm_tok(tok)
    e('s_barrier')
    e(f's_lshl_b32 s62, {sI}, 4\n s_add_u32 s62, s62, {sJ}')
    publish_flag(e, FL_O, 's62')
```

```python
from common import *
from p0 import *
from p1 import sum4, bf16_round4

M2 = LDS_MISC
M2_SB, M2_G2, M2_GA, M2_GB = M2, M2 + 2560, M2 + 5120, M2 + 5440
VEC = M2 + 5760
UVT = VEC + 3840
RSB = UVT + 1536
assert RSB + 2048 <= LDS_SIZE
RED3 = 122880
RED5 = 0
X1P = 230
A_X, A_M2 = 200, 210


def ksplit_setup(e):
    e(f'''
    s_lshr_b32 s60, {sJ}, 3
    s_and_b32 s61, {sJ}, 7
    s_lshl_b32 s62, {sI}, 3
    s_lshl_b32 s63, s60, 2
    s_add_u32 s62, s62, s63
    ''')


def p3_prefetch(e):
    ksplit_setup(e)
    e(f'''
    s_mul_i32 s98, s61, 20
    s_and_b32 s58, {sW}, 1
    s_mul_i32 s58, s58, 10
    s_add_u32 s98, s98, s58
    s_mul_i32 s98, s98, 5120
    s_add_u32 s98, s98, {WS_WOF}
    s_add_u32 s57, s62, {sW}
    s_lshl_b32 s57, s57, 4
    s_mul_i32 s63, s57, 1280
    s_mul_i32 s58, s61, 160
    s_add_u32 s63, s63, s58
    v_and_b32 v4, 15, v1
    v_lshrrev_b32 v5, 4, v1
    v_mul_u32_u24 v7, 1280, v4
    v_lshl_add_u32 v7, v5, 3, v7
    v_lshlrev_b32 v4, 4, v0
    v_add_u32 v5, {(1920 + 1024) * 4}, v4          ; tid < 64
    s_mul_i32 s58, s61, 320
    s_add_u32 s59, s58, {1280 * 4 - 64 * 16}
    v_add_u32 v6, s59, v4
    s_add_u32 s59, s58, {3200 * 4 - 84 * 16}
    v_add_u32 v8, s59, v4
    v_cmp_gt_u32 vcc, 84, v0
    v_cndmask_b32 v6, v8, v6, vcc
    v_cmp_gt_u32 vcc, 64, v0
    v_cndmask_b32 v5, v6, v5, vcc
    v_add_u32 v4, {1920 * 4}, v4
    s_mul_i32 s99, {sJ}, 122880
    s_mul_i32 s60, {sW}, 10240
    s_add_u32 s60, s60, 81920
    s_add_u32 s99, s99, s60
    s_add_u32 s99, s99, {WS_W1F}
    ''')
    out = []
    for p in range(4):
        out.append(f's_mov_b32 s57, {WS_MODP + p * 15360}')
        out.append(f'buffer_load_dwordx4 {a4(A_M2 + 4 * p)}, v4, {srd(S_WS)}, s57 offen sc1')
        out.append(f's_mov_b32 s57, {WS_MODP + p * 15360}')
        out.append(f'buffer_load_dwordx4 {a4(A_M2 + 16 + 4 * p)}, v5, {srd(S_WS)}, s57 offen sc1')
    for k in range(50):
        if k and k % 4 == 0:
            out.append('s_add_u32 s98, s98, 4096')
        out.append(f'buffer_load_dwordx4 {a4(4 * k)}, v2, {srd(S_WS)}, s98 offen offset:{(k % 4) * 1024} sc1')
    for a in range(5):
        out.append(f'buffer_load_dwordx2 {ar(A_X + 2 * a, 2)}, v7, {srd(S_X)}, s63 offen offset:{32 * a}')
    for k in range(10):
        out.append(f's_add_u32 m0, s60, {k * 1024}')
        out.append(f's_add_u32 s59, s99, {k * 1024}')
        out.append(f'buffer_load_dwordx4 v2, {srd(S_WS)}, s59 offen sc1 lds')
    return out


def window_c(e):
    R0, R1 = 16, 32
    for k in range(16):
        e(f'v_accvgpr_read_b32 v{R0 + k}, a{A_M2 + k}')
    for k in range(16):
        e(f'v_accvgpr_read_b32 v{R1 + k}, a{A_M2 + 16 + k}')
    e(f'''
    v_cmp_le_u32 vcc, 160, v0
    v_cndmask_b32 v5, 0, 1.0, vcc
    v_cmp_gt_u32 vcc, 64, v0
    v_cndmask_b32 v6, 0, 1.0, vcc
    ''')
    for R, one in ((R0, 'v5'), (R1, 'v6')):
        sum4(e, R)
        bf16_round4(e, R)
        for k in range(4):
            e(f'v_add_f32 v{R + k}, {one}, v{R + k}')
        bf16_round4(e, R)
    e(f'''
    v_lshlrev_b32 v3, 4, v0
    v_add_u32 v3, {M2}, v3
    v_add_u32 v4, 4096, v3
    ds_write_b128 v3, {v4(R0)}
    v_cmp_gt_u32 vcc, 104, v0
    s_and_saveexec_b64 s[58:59], vcc
    ''')
    lbl = e.new_label('M2S')
    e(f's_cbranch_execz {lbl}')
    e.raw(f'ds_write_b128 v4, {v4(R1)}')
    e.label(lbl)
    e('s_mov_b64 exec, s[58:59]')
    e.force_wait(lg=0)
    e('s_barrier')
    for rd in range(3):
        B = 16 + 16 * rd
        e(f'''
        v_add_u32 v{B}, {256 * rd}, v0       ; p
        v_lshrrev_b32 v4, 4, v{B}            ; step
        v_mul_u32_u24 v5, 13108, v4
        v_lshrrev_b32 v5, 16, v5
        v_mul_u32_u24 v6, 5, v5
        v_sub_u32 v6, v4, v6                 ; q
        v_bfe_u32 v7, v{B}, 3, 1             ; h
        v_and_b32 v8, 7, v{B}                ; jj
        v_lshrrev_b32 v9, 2, v8
        v_and_b32 v10, 3, v8
        v_and_b32 v11, 1, v6
        v_lshl_add_u32 v11, v11, 1, v7
        v_lshl_add_u32 v11, v11, 2, v10
        v_lshl_add_u32 v11, v9, 4, v11
        v_lshrrev_b32 v12, 1, v6
        v_lshl_add_u32 v11, v12, 5, v11
        v_lshl_add_u32 v12, v7, 3, v8
        v_add_u32 v12, 64, v12
        v_cmp_eq_u32 vcc, 4, v6
        v_cndmask_b32 v11, v11, v12, vcc
        v_mul_u32_u24 v5, 80, v5
        v_add_u32 v11, v11, v5               ; channel
        v_lshlrev_b32 v11, 2, v11
        v_min_u32 v11, 2556, v11
        v_add_u32 v11, {M2}, v11
        ds_read_b32 v{B + 1}, v11 offset:{M2_G2 - M2}
        ds_read_b32 v{B + 2}, v11 offset:{M2_SB - M2}
        v_lshlrev_b32 v{B + 3}, 1, v{B}
        v_add_u32 v{B + 3}, {VEC}, v{B + 3}
        ''')
    e('v_mov_b32 v15, 0x3f800000')
    for rd in range(2):
        B = 16 + 16 * rd
        e(f'ds_write_b16_d16_hi v{B + 3}, v{B + 1}')
        e(f'ds_write_b16_d16_hi v{B + 3}, v{B + 2} offset:1280')
        e(f'ds_write_b16_d16_hi v{B + 3}, v15 offset:2560')
    B = 48
    lbl = e.new_label('VS')
    e.wait(lg=0)
    e(f'''
    v_cmp_gt_u32 vcc, 640, v{B}
    s_and_saveexec_b64 s[58:59], vcc
    s_cbranch_execz {lbl}
    ''')
    e.raw(f'ds_write_b16_d16_hi v{B + 3}, v{B + 1}')
    e.raw(f'ds_write_b16_d16_hi v{B + 3}, v{B + 2} offset:1280')
    e.raw(f'ds_write_b16_d16_hi v{B + 3}, v15 offset:2560')
    e.label(lbl)
    e('s_mov_b64 exec, s[58:59]')
    e(f'''
    s_mul_i32 s57, {sJ}, 192
    v_min_u32 v3, 95, v0
    v_lshlrev_b32 v4, 1, v3
    buffer_load_ushort v70, v4, {srd(S_B1)}, s57 offen
    v_lshlrev_b32 v71, 2, v3
    v_add_u32 v71, {UVT + 3 * 384}, v71
    ''')
    e.force_wait(lg=0)
    sk = e.new_label('WC')
    e(f'''
    s_cmp_eq_u32 {sW}, 0
    s_cbranch_scc1 {sk}
    s_sub_u32 s58, {sW}, 1
    s_mul_i32 s58, s58, {27 * 1024}
    s_mul_i32 s57, {sJ}, 122880
    s_add_u32 s57, s57, s58
    s_add_u32 s57, s57, {WS_W1F}
    ''')
    for k in range(27):
        e.raw(f's_add_u32 m0, s58, {k * 1024}')
        e.raw(f's_add_u32 s59, s57, {k * 1024}')
        e.raw(f'buffer_load_dwordx4 v2, {srd(S_WS)}, s59 offen sc1 lds')
    e.maybe_vm(27)
    e.label(sk)


def b1_finish(e):
    e('v_lshlrev_b32 v70, 16, v70\n ds_write_b32 v71, v70')


def lane_vec_reads(e, dst, vaddr, off):
    for a in range(5):
        e(f'ds_read_b128 {v4(dst + 4 * a)}, {vaddr} offset:{off + 64 * a}')


def poll_group(e, base):
    e(f'''
    v_and_b32 v8, 15, v1
    s_lshl_b32 s57, {sI}, 4
    v_add_u32 v8, s57, v8
    v_lshlrev_b32 v8, 7, v8
    v_add_u32 v8, {base}, v8
    ''')
    poll_flags(e, 8, 1)


def p3(e):
    window_c(e)
    ksplit_setup(e)
    e.ts(14)
    poll_group(e, FL_O)
    e.ts(15)
    BF, ACC = 80, 160
    e(f'''
    s_and_b32 s57, {sW}, 1
    s_mul_i32 s58, s57, 10
    s_add_u32 s59, s62, {sW}
    s_xor_b32 s63, {sW}, 1
    s_add_u32 s63, s63, s62
    s_mul_i32 s59, s59, 20
    s_add_u32 s59, s59, s58
    s_lshl_b32 s59, s59, 10
    s_add_u32 s96, s59, {WS_OF}
    s_mul_i32 s63, s63, 20
    s_add_u32 s63, s63, s58
    s_lshl_b32 s63, s63, 10
    s_add_u32 s97, s63, {WS_OF}
    ''')
    def oload(tau, s):
        sr = 's97' if tau == 1 else 's96'
        out = []
        if s and s % 4 == 0:
            out.append(f's_add_u32 {sr}, {sr}, 4096')
        out.append(f'buffer_load_dwordx4 {v4(BF + (10 * tau + s) * 4)}, v2, {srd(S_WS)}, {sr} offen offset:{(s % 4) * 1024} sc1')
        return out
    for s in range(10):
        for x in oload(1, s):
            e(x)
    b1_finish(e)
    e(f'''
    v_lshrrev_b32 v4, 4, v1            ; g
    v_lshlrev_b32 v6, 4, v4
    v_add_u32 v7, {M2}, v6             ; slices: 4g*4
    s_mul_i32 s57, s61, 320
    v_add_u32 v6, s57, v7
    s_xor_b32 s57, {sW}, 1
    s_mul_i32 s57, s57, 5120
    s_add_u32 s57, s57, {RED3}
    v_add_u32 v8, s57, v2              ; reduction write address
    s_mul_i32 s57, {sW}, 5120
    s_add_u32 s57, s57, {RED3}
    v_add_u32 v9, s57, v2              ; reduction read address
    ''')
    GA, G2, SBv = 16, 36, 56
    lane_vec_reads(e, GA, 'v7', M2_GA - M2)
    lane_vec_reads(e, G2, 'v6', M2_G2 - M2)
    lane_vec_reads(e, SBv, 'v6', M2_SB - M2)
    X = 204
    for k in range(10):
        e(f'v_accvgpr_read_b32 v{224 + (k & 1)}, a{A_X + k}')
        e(f'v_lshlrev_b32 v{X + 2 * k}, 16, v{224 + (k & 1)}')
        e(f'v_and_b32 v{X + 2 * k + 1}, 0xffff0000, v{224 + (k & 1)}')
    for tau in (1, 0):
        for s in range(10):
            for a in range(5):
                r = v4(ACC + (5 * tau + a) * 4)
                c = '0' if s == 0 else r
                e(f'v_mfma_f32_16x16x32_bf16 {r}, {a4((5 * s + a) * 4)}, {v4(BF + (10 * tau + s) * 4)}, {c}')
            if tau == 1:
                for x in oload(0, s):
                    e(x)
            if s == 0 or s == 9:
                e.ts(48 + 2 * (1 - tau) + (1 if s == 9 else 0))
            if tau == 0 and s == 1:
                for a in range(5):
                    e(f'ds_write_b128 v8, {v4(ACC + (5 + a) * 4)} offset:{a * 1024}')
    e.ts(16)
    e.wait(lg=0)
    e('s_barrier')
    T = ACC + 20
    for a in range(5):
        e(f'ds_read_b128 {v4(T + 4 * a)}, v9 offset:{a * 1024}')
    for k in range(10):
        e(f'v_pk_add_f32 {v2(ACC + 2 * k)}, {v2(ACC + 2 * k)}, {v2(T + 2 * k)}')
    e.ts(17)
    Y, YP = 80, 100
    for k in range(10):
        e(f'v_pk_fma_f32 {v2(X + 2 * k)}, {v2(GA + 2 * k)}, {v2(ACC + 2 * k)}, {v2(X + 2 * k)}')
    for k in range(10):
        e(f'v_pk_mul_f32 {v2(Y + 2 * k)}, {v2(X + 2 * k)}, {v2(G2 + 2 * k)}')
    for k in range(10):
        e(f'v_cvt_pk_bf16_f32 v{YP + k}, v{Y + 2 * k}, v{Y + 2 * k + 1}')
    e(f'''
    s_lshr_b32 s57, s62, 1
    s_lshr_b32 s58, {sW}, 1
    s_add_u32 s57, s57, s58            ; tb32
    s_mul_i32 s96, s57, 40
    s_mul_i32 s58, s61, 5
    s_add_u32 s96, s96, s58
    s_lshl_b32 s96, s96, 10
    s_and_b32 s58, {sW}, 1
    s_lshl_b32 s58, s58, 8
    s_add_u32 s96, s96, s58
    s_add_u32 s96, s96, {WS_X1G}
    s_lshl_b32 s97, s57, 3
    s_add_u32 s97, s97, s61
    s_lshl_b32 s97, s97, 10
    s_lshl_b32 s58, s58, 1
    s_add_u32 s97, s97, s58
    s_add_u32 s97, s97, {WS_STATS}
    v_and_b32 v3, 15, v1               ; t16
    v_lshrrev_b32 v5, 1, v4            ; g>>1
    v_and_b32 v7, 1, v4                ; g&1
    v_lshlrev_b32 v8, 10, v5
    v_lshl_add_u32 v8, v7, 9, v8
    v_lshl_add_u32 v8, v3, 4, v8
    v_lshlrev_b32 v9, 9, v5
    v_lshl_add_u32 v9, v3, 4, v9
    v_lshl_add_u32 v9, v7, 3, v9
    buffer_store_dwordx4 {v4(YP)}, v8, {srd(S_WS)}, s96 offen sc1
    buffer_store_dwordx4 {v4(YP + 4)}, v8, {srd(S_WS)}, s96 offen offset:2048 sc1
    s_add_u32 s96, s96, 4096
    buffer_store_dwordx2 {v2(YP + 8)}, v9, {srd(S_WS)}, s96 offen sc1
    ''')
    ST = 112
    defs = [('add', X, None), ('fma', X, X), ('add', Y, None), ('fma', Y, Y), ('fma', Y, G2), ('fma', Y, SBv)]
    for k in range(10):
        for n, (op, A, B) in enumerate(defs):
            r = ST + 2 * n
            if op == 'add':
                if k == 0:
                    e(f'v_pk_add_f32 {v2(r)}, {v2(A)}, {v2(A + 2)}')
                elif k >= 2:
                    e(f'v_pk_add_f32 {v2(r)}, {v2(r)}, {v2(A + 2 * k)}')
            else:
                if k == 0:
                    e(f'v_pk_mul_f32 {v2(r)}, {v2(A)}, {v2(B)}')
                else:
                    e(f'v_pk_fma_f32 {v2(r)}, {v2(A + 2 * k)}, {v2(B + 2 * k)}, {v2(r)}')
    for n in range(6):
        e(f'v_add_f32 v{ST + 2 * n}, v{ST + 2 * n}, v{ST + 2 * n + 1}')
    for swp in ('v_permlane16_swap_b32', 'v_permlane32_swap_b32'):
        for n in range(6):
            e(f'v_mov_b32 v{ST + 2 * n + 1}, v{ST + 2 * n}')
        for n in range(6):
            e(f'{swp} v{ST + 2 * n}, v{ST + 2 * n + 1}')
        for n in range(6):
            e(f'v_add_f32 v{ST + 2 * n}, v{ST + 2 * n}, v{ST + 2 * n + 1}')
    e(f'''
    v_cmp_eq_u32 vcc, 0, v4
    v_lshlrev_b32 v10, 5, v3
    v_lshl_add_u32 v10, v4, 4, v10
    v_cndmask_b32 v12, v{ST + 8}, v{ST}, vcc
    v_cndmask_b32 v13, v{ST + 10}, v{ST + 2}, vcc
    v_cndmask_b32 v14, 0, v{ST + 4}, vcc
    v_cndmask_b32 v15, 0, v{ST + 6}, vcc
    v_mov_b32 v11, 0xf0000000
    v_cmp_gt_u32 vcc, 2, v4
    v_cndmask_b32 v10, v11, v10, vcc
    buffer_store_dwordx4 v[12:15], v10, {srd(S_WS)}, s97 offen sc1
    ''')
    for k in range(10):
        e(f'v_cvt_pk_bf16_f32 v{X1P + k}, v{X + 2 * k}, v{X + 2 * k + 1}')
    e.settle()
    e('s_barrier')
    e(f's_lshl_b32 s62, {sI}, 4\n s_add_u32 s62, s62, {sJ}')
    publish_flag(e, FL_X1, 's62')


def wave_allsum(e, r, t):
    dpp_rowsum(e, r)
    for swp in ('v_permlane16_swap_b32', 'v_permlane32_swap_b32'):
        e(f'v_mov_b32 v{t}, v{r}')
        e(f'{swp} v{r}, v{t}')
        e(f'v_add_f32 v{r}, v{r}, v{t}')


def window_d(e, C):
    e(f'''
    s_min_u32 s57, {sW}, 2
    s_mul_i32 s58, s57, 40960
    v_add_u32 v3, s58, v2              ; W1 fragment address
    v_and_b32 v4, 31, v1
    v_min_u32 v4, 2, v4
    v_mul_u32_u24 v4, 1280, v4
    v_lshrrev_b32 v5, 5, v1
    v_lshl_add_u32 v4, v5, 4, v4
    v_add_u32 v4, {VEC}, v4
    v_mul_u32_u24 v6, 40, v1
    v_add_u32 v6, {M2}, v6
    ''')

    def rd(s):
        b = 16 + 8 * (s & 3)
        return [f'ds_read_b128 {v4(b)}, v3 offset:{s * 1024}', f'ds_read_b128 {v4(b + 4)}, v4 offset:{s * 32}']
    G, S_, r0 = 84, 94, 104
    work = []
    for k in range(5):
        work.append(f'ds_read_b64 {v2(G + 2 * k)}, v6 offset:{M2_G2 - M2 + 8 * k}')
        work.append(f'ds_read_b64 {v2(S_ + 2 * k)}, v6 offset:{M2_SB - M2 + 8 * k}')
    defs = [('add', G, None), ('add', S_, None), ('mul', G, G), ('mul', G, S_), ('mul', S_, S_)]
    for n, (op, A, B) in enumerate(defs):
        r = r0 + 2 * n
        for k in range(5):
            if op == 'add':
                if k == 0:
                    work.append(f'v_pk_add_f32 {v2(r)}, {v2(A)}, {v2(A + 2)}')
                elif k >= 2:
                    work.append(f'v_pk_add_f32 {v2(r)}, {v2(r)}, {v2(A + 2 * k)}')
            else:
                if k == 0:
                    work.append(f'v_pk_mul_f32 {v2(r)}, {v2(A)}, {v2(B)}')
                else:
                    work.append(f'v_pk_fma_f32 {v2(r)}, {v2(A + 2 * k)}, {v2(B + 2 * k)}, {v2(r)}')
        work.append(f'v_add_f32 v{C + n}, v{r}, v{r + 1}')
    for nn in (8, 4, 2, 1):
        for n in range(5):
            work.append(f'v_add_f32_dpp v{C + n}, v{C + n}, v{C + n} row_ror:{nn} row_mask:0xf bank_mask:0xf')
    for swp in ('v_permlane16_swap_b32', 'v_permlane32_swap_b32'):
        for n in range(5):
            work.append(f'v_mov_b32 v{r0 + n}, v{C + n}')
        for n in range(5):
            work.append(f'{swp} v{C + n}, v{r0 + n}')
        for n in range(5):
            work.append(f'v_add_f32 v{C + n}, v{C + n}, v{r0 + n}')
    for n in range(5):
        work.append(f'v_mul_f32 v{C + n}, {hexf(1.0 / 640)}, v{C + n}')
    for s in range(3):
        for x in rd(s):
            e(x)
    wi = 0
    for s in range(40):
        if s + 3 < 40:
            for x in rd(s + 3):
                e(x)
        b = 16 + 8 * (s & 3)
        c = '0' if s == 0 else vr(64, 16)
        e(f'v_mfma_f32_32x32x16_bf16 {vr(64, 16)}, {v4(b)}, {v4(b + 4)}, {c}')
        for x in work[wi:wi + 3]:
            e(x)
        wi += 3
    for x in work[wi:]:
        e(x)
    e(f'''
    v_and_b32 v4, 31, v1
    v_mul_u32_u24 v4, 384, v4
    v_lshl_add_u32 v4, v5, 4, v4
    s_lshl_b32 s57, s57, 7
    s_add_u32 s57, s57, {UVT}
    v_add_u32 v4, s57, v4
    s_mov_b32 exec_lo, 7
    s_mov_b32 exec_hi, 7
    ''')
    for q in range(4):
        e(f'ds_write_b128 v4, {v4(64 + 4 * q)} offset:{32 * q}')
    e('s_mov_b64 exec, -1')
    e.wait(lg=0)


def w2_setup(e):
    e(f'''
    s_and_b32 s61, {sJ}, 7
    s_mul_i32 s57, s61, 48
    s_mul_i32 s58, {sW}, 12
    s_add_u32 s57, s57, s58
    s_mul_i32 s57, s57, 5120
    s_add_u32 s95, s57, {WS_W2F}
    ''')


def w2loads(k0, k1):
    out = []
    for k in range(k0, k1):
        if k and k % 4 == 0:
            out.append('s_add_u32 s95, s95, 4096')
        out.append(f'buffer_load_dwordx4 {a4(4 * k)}, v2, {srd(S_WS)}, s95 offen offset:{(k % 4) * 1024} sc1')
    return out


def groups_of(lst):
    groups, cur = [], []
    for x in lst:
        cur.append(x)
        if x.startswith('buffer'):
            groups.append(cur)
            cur = []
    if cur:
        groups.append(cur)
    return groups


def p4(e):
    C = 156
    w2_setup(e)
    for x in w2loads(0, 20):
        e(x)
    window_d(e, C)
    e.ts(19)
    poll_group(e, FL_X1)
    e.ts(20)
    SR = 96

    def xreg(s):
        return v4(16 + 4 * s) if s < 16 else a4(160 + 4 * (s - 16))
    e(f'''
    s_lshl_b32 s57, {sI}, 2
    s_add_u32 s57, s57, {sW}           ; tb32
    s_mul_i32 s98, s57, 40960
    s_add_u32 s98, s98, {WS_X1G}
    s_lshl_b32 s99, s57, 13
    s_add_u32 s99, s99, {WS_STATS}
    ''')

    def xload(s):
        out = []
        if s and s % 4 == 0:
            out.append('s_add_u32 s98, s98, 4096')
        out.append(f'buffer_load_dwordx4 {xreg(s)}, v2, {srd(S_WS)}, s98 offen offset:{(s % 4) * 1024} sc1')
        return out

    def sload(cs):
        out = []
        if cs == 4:
            out.append('s_add_u32 s99, s99, 4096')
        out.append(f'buffer_load_dwordx4 {v4(SR + 4 * cs)}, v2, {srd(S_WS)}, s99 offen offset:{(cs % 4) * 1024} sc1')
        return out
    NUP = 10
    for s in range(NUP):
        for x in xload(s):
            e(x)
    RSC = 152
    rs = []
    for cs in range(1, 8):
        for h in range(2):
            rs.append(f'v_pk_add_f32 {v2(SR + 2 * h)}, {v2(SR + 2 * h)}, {v2(SR + 4 * cs + 2 * h)}')
    T = SR + 8
    for k in range(4):
        rs.append(f'v_mov_b32_dpp v{T + k}, v{SR + k} quad_perm:[1,0,3,2] row_mask:0xf bank_mask:0xf')
    rs.append('v_and_b32 v3, 1, v1')
    rs.append('v_cmp_eq_u32 vcc, 0, v3')
    for k in range(4):
        rs.append(f'v_cndmask_b32 v{SR + 16 + k}, v{T + k}, v{SR + k}, vcc')
    for k in range(2):
        rs.append(f'v_cndmask_b32 v{SR + 20 + k}, v{SR + k}, v{T + k}, vcc')
    Sx, Sxx, Sy, Syy, Syg, Sys = (SR + 16 + k for k in range(6))
    r0 = SR
    inv = hexf(1.0 / 640)
    rs += f'''v_mul_f32 v{Sx}, {inv}, v{Sx}
    v_mul_f32 v{Sxx}, {inv}, v{Sxx}
    v_mul_f32 v{Sy}, {inv}, v{Sy}
    v_mul_f32 v{Syy}, {inv}, v{Syy}
    v_mul_f32 v{Syg}, {inv}, v{Syg}
    v_mul_f32 v{Sys}, {inv}, v{Sys}
    v_fma_f32 v{r0}, -v{Sx}, v{Sx}, v{Sxx}
    v_add_f32 v{r0}, {hexf(1e-5)}, v{r0}
    v_rsq_f32 v{r0}, v{r0}
    v_fma_f32 v{r0 + 1}, -v{Sx}, v{C}, v{Sy}
    v_mul_f32 v{r0 + 3}, v{Sx}, v{C + 2}
    v_fma_f32 v{r0 + 2}, v{r0}, v{r0 + 1}, v{C + 1}
    v_fma_f32 v{r0 + 3}, -2.0, v{Syg}, v{r0 + 3}
    v_fma_f32 v{r0 + 3}, v{Sx}, v{r0 + 3}, v{Syy}
    v_fma_f32 v{r0 + 4}, -v{Sx}, v{C + 3}, v{Sys}
    v_mul_f32 v{r0 + 5}, v{r0}, v{r0 + 3}
    v_fma_f32 v{r0 + 5}, 2.0, v{r0 + 4}, v{r0 + 5}
    v_fma_f32 v{r0 + 5}, v{r0}, v{r0 + 5}, v{C + 4}
    v_fma_f32 v{r0 + 5}, -v{r0 + 2}, v{r0 + 2}, v{r0 + 5}
    v_add_f32 v{r0 + 5}, {hexf(1e-5)}, v{r0 + 5}
    v_rsq_f32 v{r0 + 5}, v{r0 + 5}
    s_lshl_b32 s57, {sW}, 9
    s_add_u32 s57, s57, {RSB}
    v_mul_f32 v{r0 + 8}, v{r0 + 5}, v{r0}
    v_mul_f32 v{r0 + 9}, -v{r0 + 8}, v{Sx}
    v_mov_b32 v{r0 + 10}, v{r0 + 5}
    v_mul_f32 v{r0 + 11}, -v{r0 + 5}, v{r0 + 2}
    v_lshrrev_b32 v3, 1, v1
    v_lshlrev_b32 v3, 4, v3
    v_add_u32 v3, s57, v3
    ds_write_b128 v3, {v4(r0 + 8)}
    v_and_b32 v3, 31, v1
    v_lshlrev_b32 v3, 4, v3
    v_add_u32 v3, s57, v3
    ds_read_b128 {v4(RSC)}, v3'''.split('\n')
    rs = [x.strip() for x in rs]
    c0 = -2.0 * LOG2E * (2.0 / 3.141592653589793) ** 0.5
    c1 = c0 * 0.044715
    vW, vK, vO = [240, 241, 242], 243, 244
    e(f'''
    s_lshl_b32 s57, {sI}, 3
    s_lshl_b32 s58, {sW}, 1
    s_add_u32 s57, s57, s58
    s_mul_i32 s57, s57, 48
    s_mul_i32 s58, {sJ}, 3
    s_add_u32 s57, s57, s58
    s_lshl_b32 s57, s57, 10
    s_add_u32 s96, s57, {WS_HH}
    v_bfe_u32 v3, v1, 4, 1
    v_mul_u32_u24 v3, 49152, v3
    v_and_b32 v4, 15, v1
    v_lshl_add_u32 v3, v4, 4, v3
    v_lshrrev_b32 v4, 5, v1
    v_lshl_add_u32 v{vO}, v4, 8, v3
    v_lshlrev_b32 v4, 4, v4
    v_add_u32 v{vK}, {UVT}, v4
    s_mov_b32 s60, {hexf(c0)}
    s_mov_b32 s61, {hexf(c0)}
    s_mov_b32 s62, {hexf(c1)}
    s_mov_b32 s63, {hexf(c1)}
    v_mov_b32 v{vW[0]}, v2
    v_add_u32 v{vW[1]}, 40960, v2
    v_add_u32 v{vW[2]}, 81920, v2
    ''')
    ACC = [176, 192, 208]
    KB_ = 128
    tt = [144, 146, 148, 150]
    WF = [[80, 84], [88, 92]]

    def epi(tau):
        Z = ACC[tau]
        out = []

        def consts(q):
            return [f'ds_read_b128 {v4(KB_ + 4 * n)}, v{vK} offset:{n * 384 + (32 * tau + 8 * q) * 4}' for n in range(4)]
        out += consts(0)
        for q in range(4):
            aff = []
            for r in range(4):
                aff.append(f'v_fma_f32 v{Z + 4 * q + r}, v{Z + 4 * q + r}, v{RSC}, v{KB_ + 12 + r}')
            for n, sc in ((0, RSC + 1), (1, RSC + 2), (2, RSC + 3)):
                for r in range(4):
                    aff.append(f'v_fmac_f32 v{Z + 4 * q + r}, v{KB_ + 4 * n + r}, v{sc}')
            out += ['M'] + aff[:8] + ['M'] + aff[8:]
            if q < 3:
                nxt = consts(q + 1)
            else:
                nxt = []
            a_, b_ = tt[(2 * q) & 3], tt[(2 * q + 1) & 3]
            za, zb = Z + 4 * q, Z + 4 * q + 2
            out += nxt
            out += [f'v_pk_mul_f32 {v2(a_)}, {v2(za)}, {v2(za)}', f'v_pk_mul_f32 {v2(b_)}, {v2(zb)}, {v2(zb)}',
                    f'v_pk_mul_f32 {v2(a_)}, {v2(a_)}, s[62:63]', f'v_pk_mul_f32 {v2(b_)}, {v2(b_)}, s[62:63]',
                    f'v_pk_add_f32 {v2(a_)}, {v2(a_)}, s[60:61]', f'v_pk_add_f32 {v2(b_)}, {v2(b_)}, s[60:61]',
                    f'v_pk_mul_f32 {v2(a_)}, {v2(a_)}, {v2(za)}', f'v_pk_mul_f32 {v2(b_)}, {v2(b_)}, {v2(zb)}',
                    'M', f'v_exp_f32 v{a_}, v{a_}', f'v_exp_f32 v{a_ + 1}, v{a_ + 1}', f'v_exp_f32 v{b_}, v{b_}', f'v_exp_f32 v{b_ + 1}, v{b_ + 1}',
                    f'v_pk_add_f32 {v2(a_)}, {v2(a_)}, 1.0 op_sel_hi:[1,0]', f'v_pk_add_f32 {v2(b_)}, {v2(b_)}, 1.0 op_sel_hi:[1,0]',
                    'M', f'v_rcp_f32 v{a_}, v{a_}', f'v_rcp_f32 v{a_ + 1}, v{a_ + 1}', f'v_rcp_f32 v{b_}, v{b_}', f'v_rcp_f32 v{b_ + 1}, v{b_ + 1}',
                    'M', f'v_mul_f32 v{za}, v{za}, v{a_}', f'v_mul_f32 v{za + 1}, v{za + 1}, v{a_ + 1}',
                    f'v_mul_f32 v{zb}, v{zb}, v{b_}', f'v_mul_f32 v{zb + 1}, v{zb + 1}, v{b_ + 1}',
                    f'v_cvt_pk_bf16_f32 v{Z + 2 * q}, v{za}, v{za + 1}', f'v_cvt_pk_bf16_f32 v{Z + 2 * q + 1}, v{zb}, v{zb + 1}', 'G']
            if q == 1:
                out.append(f's_add_u32 s57, s96, {1024 * tau}')
                out.append(f'buffer_store_dwordx4 {v4(Z)}, v{vO}, {srd(S_WS)}, s57 offen sc1')
            if q == 3:
                out.append(f's_add_u32 s57, s96, {1024 * tau}')
                out.append(f'buffer_store_dwordx4 {v4(Z + 4)}, v{vO}, {srd(S_WS)}, s57 offen offset:512 sc1')
        return out
    e.ts(21)

    NB1 = 3
    WF1 = [[80, 84], [88, 92], [246, 250]]

    def wr1(s):
        return [f'ds_read_b128 {v4(WF1[s % NB1][t])}, v{vW[t]} offset:{s * 1024}' for t in range(2)]
    for x in wr1(0) + wr1(1):
        e(x)
    later = [xload(s) for s in range(NUP, 40)]
    for k, cs in enumerate(range(8)):
        later.insert(10 + 2 * k, sload(cs))
    fi = 0
    for s in range(40):
        for t in range(2):
            Z = vr(ACC[t], 16)
            e(f'v_mfma_f32_32x32x16_bf16 {Z}, {v4(WF1[s % NB1][t])}, {xreg(s)}, {"0" if s == 0 else Z}')
            if t == 0 and later:
                for x in later.pop(0):
                    e(x)
            if t == 0 and s + 2 < 40:
                for x in wr1(s + 2):
                    e(x)
        if s < 8 and later:
            for x in later.pop(0):
                e(x)
        if s >= 28:
            for x in rs[fi:fi + 6]:
                e(x)
            fi += 6
    assert not later
    for x in rs[fi:]:
        e(x)
    e.ts(18)

    WF2 = [80, 84, 88, 92]

    def wr2(s):
        return f'ds_read_b128 {v4(WF2[s % 4])}, v{vW[2]} offset:{s * 1024}'
    for s in range(3):
        e(wr2(s))
    fill = epi(0) + epi(1)
    w2 = groups_of(w2loads(20, 40))
    Z = vr(ACC[2], 16)
    s = 0
    for x in fill:
        if x == 'M':
            e(f'v_mfma_f32_32x32x16_bf16 {Z}, {v4(WF2[s % 4])}, {xreg(s)}, {"0" if s == 0 else Z}')
            if s + 3 < 40:
                e(wr2(s + 3))
            s += 1
        elif x == 'G':
            for _ in range(3):
                if w2:
                    for y in w2.pop(0):
                        e(y)
        else:
            e(x)
    assert s == 40, s
    assert not w2
    e.ts(22)
    for x in epi(2):
        if x not in ('M', 'G'):
            e(x)
    tok = e.vm_token()
    for x in w2loads(40, 60):
        e(x)
    e.wait_vm_tok(tok)
    e('s_barrier')
    e(f's_lshl_b32 s62, {sI}, 4\n s_add_u32 s62, s62, {sJ}')
    publish_flag(e, FL_HH, 's62')


def p5(e):
    ksplit_setup(e)
    e(f'''
    v_lshrrev_b32 v4, 4, v1
    s_mul_i32 s63, s61, 160
    v_lshlrev_b32 v7, 3, v4
    ''')
    B2R = 200
    for a in range(5):
        e(f'buffer_load_dwordx2 {v2(B2R + 2 * a)}, v7, {srd(S_B2)}, s63 offen offset:{32 * a}')
    e.ts(23)
    poll_group(e, FL_HH)
    e.ts(24)
    sr = ['s96', 's97', 's98', 's99']
    for tau in range(4):
        e(f'''
        s_add_u32 s57, {sW}, {tau}
        s_and_b32 s57, s57, 3
        s_add_u32 s57, s57, s62
        s_mul_i32 s57, s57, 48
        s_mul_i32 s58, {sW}, 12
        s_add_u32 s57, s57, s58
        s_lshl_b32 s57, s57, 10
        s_add_u32 {sr[tau]}, s57, {WS_HH}
        ''')
    BF, ACC = 16, 112
    order = [1, 2, 3, 0]

    def loads(n):
        tau = order[n]
        out = []
        for s in range(12):
            if s and s % 4 == 0:
                out.append(f's_add_u32 {sr[tau]}, {sr[tau]}, 4096')
            out.append(f'buffer_load_dwordx4 {v4(BF + ((n & 1) * 12 + s) * 4)}, v2, {srd(S_WS)}, {sr[tau]} offen offset:{(s % 4) * 1024} sc1')
        return out
    for x in loads(0):
        e(x)
    for tau in range(1, 4):
        e(f'''
        s_add_u32 s57, {sW}, {tau}
        s_and_b32 s57, s57, 3
        s_mul_i32 s57, s57, 15360
        s_add_u32 s57, s57, {RED5 + (tau - 1) * 5120}
        v_add_u32 v{210 + tau}, s57, v2
        ''')
    e(f'''
    s_mul_i32 s57, {sW}, 15360
    s_add_u32 s57, s57, {RED5}
    v_add_u32 v210, s57, v2
    v_lshlrev_b32 v6, 4, v4
    v_add_u32 v6, {M2}, v6
    ''')
    GBv, X = 16, 36
    T = ACC + 20
    e(f'''
    s_add_u32 s57, s62, {sW}
    s_lshl_b32 s57, s57, 4
    s_mul_i32 s63, s57, 1280
    s_mul_i32 s58, s61, 160
    s_add_u32 s63, s63, s58
    v_and_b32 v3, 15, v1
    v_mul_u32_u24 v7, 1280, v3
    v_lshl_add_u32 v7, v4, 3, v7
    ''')
    e.ts(43)
    for n, tau in enumerate(order):
        nxt = loads(n + 1) if n + 1 < 4 else []
        per_step = [[] for _ in range(12)]
        k = 0
        for x in nxt:
            per_step[k].append(x)
            if x.startswith('buffer'):
                k += 1
        fill = []
        if n >= 1:
            pt = order[n - 1]
            fill = [f'ds_write_b128 v{210 + pt}, {v4(ACC + (5 * pt + a) * 4)} offset:{a * 1024}' for a in range(5)]
        late = []
        if n == 3:
            late += [f'ds_read_b128 {v4(GBv + 4 * a)}, v6 offset:{M2_GB - M2 + 64 * a}' for a in range(5)]
            for sl in range(3):
                for a in range(5):
                    late.append(f'ds_read_b128 {v4(T + (5 * sl + a) * 4)}, v210 offset:{sl * 5120 + a * 1024}')
            for k2 in range(10):
                late.append(f'v_lshlrev_b32 v{X + 2 * k2}, 16, v{X1P + k2}')
                late.append(f'v_and_b32 v{X + 2 * k2 + 1}, 0xffff0000, v{X1P + k2}')
            for k2 in range(10):
                t = 192 + 2 * (k2 & 3)
                late.append(f'v_lshlrev_b32 v{t}, 16, v{B2R + k2}')
                late.append(f'v_and_b32 v{t + 1}, 0xffff0000, v{B2R + k2}')
                late.append(f'v_pk_fma_f32 {v2(X + 2 * k2)}, {v2(GBv + 2 * k2)}, {v2(t)}, {v2(X + 2 * k2)}')
        li = 0
        for s in range(12):
            for a in range(5):
                r = v4(ACC + (5 * tau + a) * 4)
                c = '0' if s == 0 else r
                b = BF + ((n & 1) * 12 + s) * 4
                e(f'v_mfma_f32_16x16x32_bf16 {r}, {a4((5 * s + a) * 4)}, {v4(b)}, {c}')
                if s in (1, 2) and fill and a < 3:
                    e(fill.pop(0))
                if n == 3 and s >= 4:
                    for x in late[li:li + 2]:
                        e(x)
                    li += 2
            for x in per_step[s]:
                e(x)
            if n == 3 and s == 3:
                e.wait(lg=0)
                e('s_barrier')
        for x in late[li:]:
            e(x)
        e.ts(44 + n)
    e.ts(25)
    for k in range(10):
        e(f'v_pk_add_f32 {v2(T + 2 * k)}, {v2(T + 2 * k)}, {v2(T + 20 + 2 * k)}')
        e(f'v_pk_add_f32 {v2(ACC + 2 * k)}, {v2(ACC + 2 * k)}, {v2(T + 40 + 2 * k)}')
    for k in range(10):
        e(f'v_pk_add_f32 {v2(ACC + 2 * k)}, {v2(ACC + 2 * k)}, {v2(T + 2 * k)}')
    for k in range(10):
        e(f'v_pk_fma_f32 {v2(X + 2 * k)}, {v2(GBv + 2 * k)}, {v2(ACC + 2 * k)}, {v2(X + 2 * k)}')
    for k in range(10):
        e(f'v_cvt_pk_bf16_f32 v{64 + k}, v{X + 2 * k}, v{X + 2 * k + 1}')
    for a in range(5):
        e(f'buffer_store_dwordx2 {v2(64 + 2 * a)}, v7, {srd(S_OUT)}, s63 offen offset:{32 * a}')


def p3_all(e, ts, upto):
    p3(e)
    ts(5)
    if upto >= 4:
        p4(e)
        ts(6)
    if upto >= 5:
        p5(e)
        ts(7)
```

```python
import sys, argparse
from emit import E
from wrap import *
from common import *
import p0, p1

HEADER = open('cdna_kernels/' + NAME + '.s.ref').read().split('; Override launch')[0].rstrip('\n')

def timestamp(e, idx, dbg):
    if not dbg: return
    lbl = e.new_label('TS')
    e(f'''s_cmp_lg_u32 {sW}, 0
    s_cbranch_scc1 {lbl}''')
    e.raw('s_memrealtime s[100:101]')
    e.raw('s_waitcnt lgkmcnt(0)')
    e.raw('v_mov_b32 v254, s100')
    e.raw('s_memtime s[100:101]')
    e.raw('s_waitcnt lgkmcnt(0)')
    e.raw('v_mov_b32 v255, s100')
    e.raw(f's_lshl_b32 s101, {sB}, 9')
    e.raw(f's_add_u32 s101, s101, {WS_TS + 8 * idx}')
    e.raw('s_mov_b64 exec, 1')
    e.raw(f'buffer_store_dwordx2 v[254:255], off, {srd(S_WS)}, s101')
    e.raw('s_nop 1')
    e.raw('s_mov_b64 exec, -1')
    e.label(lbl)

def build(upto=99, dbg=False):
    e = E()
    e.ts = lambda k: timestamp(e, k, dbg)
    END = 'L_END'
    p0.prologue(e, END)
    timestamp(e, 0, dbg)
    p0.p0(e, END, 'L_CODE_END')
    timestamp(e, 8, dbg)
    if upto >= 1:
        p1.p1_all(e)
        timestamp(e, 3, dbg)
    if upto >= 2:
        import p2
        p2.p2_all(e)
        timestamp(e, 4, dbg)
    if upto >= 3:
        import p3
        p3.p3_all(e, lambda k: timestamp(e, k, dbg), upto)
    lbl = e.new_label('EP')
    e.settle()
    e(f'''s_or_b32 s57, {sB}, {sW}
    s_cmp_lg_u32 s57, 0
    s_cbranch_scc1 {lbl}
    v_mov_b32 v3, {sTAG}
    v_mov_b32 v4, 0
    s_mov_b64 exec, 1''')
    e.raw(f'buffer_store_dword v3, v4, {srd(S_WS)}, 0 offen')
    e.label(lbl)
    timestamp(e, 31, dbg)
    e.label(END)
    e.raw('s_endpgm')
    for x in e.cold:
        e.out.append(x)
    e.label('L_CODE_END')
    k = kernel_wrap(NAME + '_kernel', e.text(), vgpr=256, agpr=256, sgpr=102)
    txt = file_wrap([(NAME + '_kernel', (256, 1, 1), (256, 1, 1), LDS_SIZE)], [k], header=HEADER, single=True)
    return txt, e

if __name__ == '__main__':
    ap = argparse.ArgumentParser()
    ap.add_argument('--upto', type=int, default=99)
    ap.add_argument('--dbg', action='store_true')
    ap.add_argument('-o', default='k.s')
    a = ap.parse_args()
    txt, e = build(a.upto, a.dbg)
    open(a.o, 'w').write(txt)
    print(a.o, len(txt), 'bytes', e.stat)
```

```python
from common import *

LOG2E = 1.4426950408889634
SPIN_MAX = 400000


def f2u(x):
    import struct
    return struct.unpack('<I', struct.pack('<f', x))[0]


def hexf(x):
    return hex(f2u(x))


SRD_TAB = {S_X: (64, 2621440), S_WQKV: (66, 2457600), S_WO: (68, 819200), S_W1: (72, 1966080), S_W2: (76, 1966080),
           S_WMOD: (82, 4915200), S_OUT: (84, 2621440), S_WS: (88, WS_SIZE), S_C: (80, 1280), S_B1: (74, 3072), S_B2: (78, 1280)}


def build_srd(e, sr):
    p, size = SRD_TAB[sr]
    e(f'''
    s_mov_b32 s{sr}, s{p}
    s_and_b32 s{sr + 1}, s{p + 1}, 0xffff
    s_mov_b32 s{sr + 2}, {size}
    s_mov_b32 s{sr + 3}, 0x20000
    ''')


def prologue(e, end_label):
    import os
    if os.environ.get('MAP', '42') == '81':
        MAP = f'''s_and_b32 {sJ}, s58, 15
    s_lshr_b32 s58, s58, 4
    s_lshl_b32 s57, s57, 1
    s_add_u32 {sI}, s57, s58'''
    else:
        MAP = f'''s_and_b32 {sJ}, s58, 7
    s_and_b32 s59, s57, 1
    s_lshl_b32 s59, s59, 3
    s_add_u32 {sJ}, {sJ}, s59
    s_lshr_b32 s58, s58, 3
    s_lshr_b32 s57, s57, 1
    s_lshl_b32 s57, s57, 2
    s_add_u32 {sI}, s57, s58'''
    e(f'''
    s_cmp_ge_u32 s2, 256
    s_cbranch_scc1 {end_label}
    s_load_dwordx16 s[64:79], s[0:1], 0
    s_load_dwordx8 s[80:87], s[0:1], 64
    s_load_dwordx2 s[88:89], s[0:1], 96
    v_and_b32 v1, 63, v0
    v_lshrrev_b32 v3, 6, v0
    s_mov_b32 {sB}, s2
    s_and_b32 s57, s2, 7
    s_lshr_b32 s58, s2, 3              ; t
    v_readfirstlane_b32 {sW}, v3
    {MAP}
    v_lshlrev_b32 v2, 4, v1
    ''')
    e.force_wait(lg=0)
    e('s_load_dword s90, s[88:89], 0')
    for sr in (S_X, S_C, S_WMOD, S_WQKV, S_WS, S_WO, S_W1, S_W2, S_OUT, S_B1, S_B2):
        build_srd(e, sr)


def get_tag(e):
    e.force_wait(lg=0)
    e(f's_add_u32 {sTAG}, s90, 0x9e3779b9')


def dpp_rowsum(e, r):
    for n in (8, 4, 2, 1):
        e(f'v_add_f32_dpp v{r}, v{r}, v{r} row_ror:{n} row_mask:0xf bank_mask:0xf')


LDS_MISC = 147456
LN_T = LDS_MISC
SIG = LDS_MISC + 12800
CST = LDS_MISC + 12864


def wave_flag(e, base, idx_sgpr):
    e(f'''
    s_lshl_b32 s57, {idx_sgpr}, 7
    s_add_u32 s57, s57, {base}
    v_mov_b32 v3, {sTAG}
    v_mov_b32 v4, 0
    s_mov_b64 exec, 1
    ''')
    e.raw(f'buffer_store_dword v3, v4, {srd(S_WS)}, s57 offen sc1')
    e.raw('s_nop 1')
    e('s_mov_b64 exec, -1')


def p0_ln(e):
    XR, XF = 16, 40
    e(f'''
    s_lshl_b32 s57, {sI}, 7
    s_lshl_b32 s58, {sJ}, 3
    s_add_u32 s57, s57, s58            ; T0
    s_mul_i32 s58, s57, 1280
    v_lshrrev_b32 v3, 4, v0            ; r = tid>>4  (0..7)
    v_and_b32 v4, 15, v0               ; c16
    v_mul_u32_u24 v5, 1280, v3
    v_lshl_add_u32 v5, v4, 4, v5
    ''')
    for u in range(5):
        e(f'buffer_load_dwordx4 {v4(XR + 4 * u)}, v5, {srd(S_X)}, s58 offen offset:{256 * u}')
    e(f'''
    s_mul_i32 s59, {sW}, 6400
    s_add_u32 s59, s59, {LN_T}
    v_and_b32 v3, 3, v3
    v_mul_u32_u24 v12, 80, v4
    v_lshl_add_u32 v12, v3, 4, v12
    v_add_u32 v12, s59, v12
    v_lshrrev_b32 v5, 2, v1            ; gi_local
    v_and_b32 v7, 3, v1                ; token
    v_mul_u32_u24 v13, 80, v5
    v_lshl_add_u32 v13, v7, 4, v13
    v_add_u32 v13, s59, v13
    v_lshrrev_b32 v14, 1, v5
    v_lshlrev_b32 v14, 10, v14
    v_and_b32 v5, 1, v5
    v_lshl_add_u32 v14, v5, 9, v14
    v_lshl_add_u32 v14, v7, 4, v14
    s_lshl_b32 s58, {sI}, 2
    s_lshr_b32 s59, {sJ}, 2
    s_add_u32 s58, s58, s59            ; tb32
    s_mul_i32 s58, s58, 40960
    s_and_b32 s59, {sJ}, 3
    s_lshl_b32 s59, s59, 7
    s_add_u32 s58, s58, s59
    s_lshl_b32 s59, {sW}, 6            ; 4 tokens * 16 B
    s_add_u32 s58, s58, s59
    s_add_u32 s62, s58, {WS_XN}
    ''')
    get_tag(e)
    e.ts(52)
    e.wait(vm=0)
    import os
    if os.environ.get('SIGAT', 'load') == 'load':
        e(f'v_mov_b32 v5, {SIG}\n v_mov_b32 v7, {sTAG}\n ds_write_b32 v5, v7')
    e.ts(53)
    for d in range(20):
        e(f'v_lshlrev_b32 v{XF + 2 * d}, 16, v{XR + d}')
        e(f'v_and_b32 v{XF + 2 * d + 1}, 0xffff0000, v{XR + d}')
    e(f'v_pk_add_f32 v[6:7], {v2(XF)}, {v2(XF + 2)}')
    e(f'v_pk_add_f32 v[8:9], {v2(XF + 4)}, {v2(XF + 6)}')
    for d in range(4, 20, 2):
        e(f'v_pk_add_f32 v[6:7], v[6:7], {v2(XF + 2 * d)}')
        e(f'v_pk_add_f32 v[8:9], v[8:9], {v2(XF + 2 * d + 2)}')
    e('v_pk_add_f32 v[6:7], v[6:7], v[8:9]')
    e('v_add_f32 v6, v6, v7')
    dpp_rowsum(e, 6)
    e(f'v_mul_f32 v6, {hexf(-1.0 / 640)}, v6')
    for d in range(20):
        e(f'v_pk_add_f32 {v2(XF + 2 * d)}, {v2(XF + 2 * d)}, v[6:7] op_sel_hi:[1,0]')
    e(f'v_pk_mul_f32 v[8:9], {v2(XF)}, {v2(XF)}')
    e(f'v_pk_mul_f32 v[10:11], {v2(XF + 2)}, {v2(XF + 2)}')
    for d in range(2, 20, 2):
        e(f'v_pk_fma_f32 v[8:9], {v2(XF + 2 * d)}, {v2(XF + 2 * d)}, v[8:9]')
        e(f'v_pk_fma_f32 v[10:11], {v2(XF + 2 * d + 2)}, {v2(XF + 2 * d + 2)}, v[10:11]')
    e('v_pk_add_f32 v[8:9], v[8:9], v[10:11]')
    e('v_add_f32 v8, v8, v9')
    dpp_rowsum(e, 8)
    e(f'v_mov_b32 v9, {hexf(1e-5)}')
    e(f'v_mov_b32 v10, {hexf(1.0 / 640)}')
    e('v_fma_f32 v8, v8, v10, v9')
    e('v_rsq_f32 v8, v8')
    for u in range(5):
        for d in range(4 * u, 4 * u + 4):
            e(f'v_pk_mul_f32 {v2(XF + 2 * d)}, {v2(XF + 2 * d)}, v[8:9] op_sel_hi:[1,0]')
        for d in range(4 * u, 4 * u + 4):
            e(f'v_cvt_pk_f16_f32 v{XR + d}, v{XF + 2 * d}, v{XF + 2 * d + 1}')
        e(f'ds_write_b128 v12, {v4(XR + 4 * u)} offset:{u * 16 * 80}')
    e.wait(lg=0)
    for u in range(5):
        e(f'ds_read_b128 {v4(XF + 4 * u)}, v13 offset:{u * 16 * 80}')
    for u in range(5):
        e(f'buffer_store_dwordx4 {v4(XF + 4 * u)}, v14, {srd(S_WS)}, s62 offen sc1')
        if u < 4:
            e('s_add_u32 s62, s62, 8192')
    e(f'''
    s_lshl_b32 s58, {sI}, 4
    s_add_u32 s58, s58, {sJ}
    s_lshl_b32 s58, s58, 1
    s_add_u32 s58, s58, {sW}
    ''')
    if os.environ.get('SIGAT', 'load') == 'store':
        e(f'v_mov_b32 v5, {SIG}\n v_mov_b32 v7, {sTAG}\n ds_write_b32 v5, v7')
    e.ts(54)
    e.settle()
    e.ts(55)
    wave_flag(e, FL_XN, 's58')
    if os.environ.get('SIGAT', 'load') == 'drain':
        e(f'v_mov_b32 v5, {SIG}\n v_mov_b32 v7, {sTAG}\n ds_write_b32 v5, v7')
        e.wait(lg=0)


def gemv_unit(e, stamp=False):
    WR, CR, SV = 16, 96, 116
    e(f'''
    s_mul_i32 s59, s61, 160            ; k0
    s_lshl_b32 s62, s59, 1
    s_mul_i32 s63, s59, 7680
    s_lshl_b32 s58, s60, 7
    s_add_u32 s63, s63, s58
    v_lshrrev_b32 v3, 3, v1            ; l>>3
    v_and_b32 v4, 7, v1
    v_mul_u32_u24 v5, 7680, v3
    v_lshl_add_u32 v5, v4, 4, v5
    v_lshlrev_b32 v6, 1, v1
    v_min_u32 v7, 31, v1
    v_lshlrev_b32 v7, 1, v7
    ''')
    e(f'buffer_load_ushort v{CR}, v6, {srd(S_C)}, s62 offen')
    e(f'buffer_load_ushort v{CR + 1}, v6, {srd(S_C)}, s62 offen offset:128')
    e(f'buffer_load_ushort v{CR + 2}, v7, {srd(S_C)}, s62 offen offset:256')
    for u in range(20):
        e(f'buffer_load_dwordx4 {v4(WR + 4 * u)}, v5, {srd(S_WMOD)}, s63 offen')
        if u < 19:
            e('s_add_u32 s63, s63, 61440')
    T = 160
    rng = range(3)
    for u in rng:
        e(f'v_lshlrev_b32 v{CR + u}, 16, v{CR + u}')
    for u in rng:
        e(f'v_mul_f32 v{T + u}, {hexf(-LOG2E)}, v{CR + u}')
    for u in rng:
        e(f'v_exp_f32 v{T + u}, v{T + u}')
    for u in rng:
        e(f'v_add_f32 v{T + u}, 1.0, v{T + u}')
    for u in rng:
        e(f'v_rcp_f32 v{T + u}, v{T + u}')
    for u in rng:
        e(f'v_mul_f32 v{T + u}, v{CR + u}, v{T + u}')
    for u in rng:
        e(f'v_cvt_pk_bf16_f32 v{T + u}, v{T + u}, v{T + u}')
    for u in rng:
        e(f'v_lshlrev_b32 v{T + u}, 16, v{T + u}')
    e(f'''
    v_lshlrev_b32 v6, 2, v1
    v_add_u32 v6, {CST}, v6
    v_lshlrev_b32 v7, 1, v7
    v_add_u32 v7, {CST + 512}, v7
    ds_write_b32 v6, v{T}
    ds_write_b32 v6, v{T + 1} offset:256
    ds_write_b32 v7, v{T + 2}
    v_lshlrev_b32 v6, 2, v3
    v_add_u32 v6, {CST}, v6
    ''')
    e.wait(lg=0)
    for u in range(20):
        e(f'ds_read_b32 v{SV + 2 * u}, v6 offset:{32 * u}')
    if stamp:
        e.wait(vm=0)
        e.ts(57, True)
    ACC = 8
    for u in range(20):
        for d in range(4):
            t = 172 + 2 * (d & 1) + 4 * (u & 1)
            e(f'v_lshlrev_b32 v{t}, 16, v{WR + 4 * u + d}')
            e(f'v_and_b32 v{t + 1}, 0xffff0000, v{WR + 4 * u + d}')
            if u == 0:
                e(f'v_pk_mul_f32 {v2(ACC + 2 * d)}, {v2(t)}, {v2(SV + 2 * u)} op_sel_hi:[1,0]')
            else:
                e(f'v_pk_fma_f32 {v2(ACC + 2 * d)}, {v2(t)}, {v2(SV + 2 * u)}, {v2(ACC + 2 * d)} op_sel_hi:[1,0,1]')
    for k in range(8):
        e(f'v_add_f32_dpp v{ACC + k}, v{ACC + k}, v{ACC + k} row_ror:8 row_mask:0xf bank_mask:0xf')
    for swp in ('v_permlane16_swap_b32', 'v_permlane32_swap_b32'):
        for k in range(8):
            e(f'v_mov_b32 v{20 + k}, v{ACC + k}')
        for k in range(8):
            e(f'{swp} v{ACC + k}, v{20 + k}')
        for k in range(8):
            e(f'v_add_f32 v{ACC + k}, v{ACC + k}, v{20 + k}')
    e(f'''
    s_mul_i32 s58, s61, 15360
    s_lshl_b32 s59, s60, 8
    s_add_u32 s58, s58, s59
    s_add_u32 s58, s58, {WS_MODP}
    v_lshlrev_b32 v6, 5, v4
    v_mov_b32 v7, 0xf0000000
    v_cmp_gt_u32 vcc, 8, v1
    v_cndmask_b32 v6, v7, v6, vcc
    buffer_store_dwordx4 v[8:11], v6, {srd(S_WS)}, s58 offen sc1
    buffer_store_dwordx4 v[12:15], v6, {srd(S_WS)}, s58 offen offset:16 sc1
    ''')


def wait_signal(e):
    lp, dn = e.new_label('SIGL'), e.new_label('SIGD')
    e(f'v_mov_b32 v5, {SIG}\n s_mov_b32 s57, 0')
    e.label(lp)
    e.raw('ds_read_b32 v7, v5')
    e.raw('s_waitcnt lgkmcnt(0)')
    e.raw(f'v_cmp_ne_u32 vcc, {sTAG}, v7')
    e.raw('s_add_u32 s57, s57, 1')
    e.raw(f's_cmp_gt_u32 s57, {SPIN_MAX}')
    e.raw(f's_cbranch_scc1 {dn}')
    e.raw(f's_cbranch_vccnz {lp}')
    e.label(dn)


def wq_dma_addr(e, vreg):
    e(f'''
    v_lshrrev_b32 v3, 4, v1
    v_lshlrev_b32 v4, 2, v3
    v_sub_u32 v4, v1, v4
    v_and_b32 v4, 15, v4
    v_mul_u32_u24 v{vreg}, 3840, v3
    v_lshl_add_u32 v{vreg}, v4, 4, v{vreg}
    ''')


def wq_dma_chunk_1wave(e, vreg, chunk, slot, sCol):
    for u in range(16):
        e(f'''
        s_mov_b32 m0, {slot * 16384 + u * 1024}
        s_add_u32 s57, {sCol}, {(64 * chunk + 4 * u) * 3840}
        ''')
        e(f'buffer_load_dwordx4 v{vreg}, {srd(S_WQKV)}, s57 offen lds')


def code_prefetch(e, start_label, end_label):
    e(f'''
    s_getpc_b64 s[92:93]
    ''')
    here = e.new_label('PCH')
    e.label(here)
    e(f'''
    s_lshr_b32 s57, {sB}, 3
    s_lshl_b32 s57, s57, 11
    v_add_u32 v10, s57, v2
    v_add_u32 v11, 1024, v10
    v_min_u32 v10, {end_label}-{here}-16, v10
    v_min_u32 v11, {end_label}-{here}-16, v11
    global_load_dwordx4 a[248:251], v10, s[92:93]
    global_load_dwordx4 a[252:255], v11, s[92:93]
    ''')


def p0(e, end_label, code_end):
    LG, LD, LJ = e.new_label('P0G'), e.new_label('P0DM'), e.new_label('P0J')
    e(f'''
    s_cmp_eq_u32 {sW}, 2
    s_cbranch_scc1 {LG}
    s_cmp_eq_u32 {sW}, 3
    s_cbranch_scc1 {LD}
    ''')
    snap = (e.vm_n, e.lg_n)
    p0_ln(e)
    e(f's_branch {LJ}')
    e.label(LG)
    e.assume_settled()
    e.smem_pend.update(['s90', '_smem'])
    LLATE = e.new_label('GL')
    e(f'''
    s_cmp_ge_u32 {sB}, 80
    s_cbranch_scc1 {LLATE}
    s_mul_i32 s61, {sB}, 3277
    s_lshr_b32 s61, s61, 16            ; ks = b/20
    s_mul_i32 s60, s61, 20
    s_sub_u32 s60, {sB}, s60           ; cg
    ''')
    e.ts(56, True)
    gemv_unit(e, True)
    get_tag(e)
    e.ts(58, True)
    e.settle()
    e.ts(59, True)
    wave_flag(e, FL_MOD, sB)
    e(f's_branch {LJ}')
    e.label(LLATE)
    e.assume_settled()
    e.smem_pend.update(['s90', '_smem'])
    get_tag(e)
    import os
    if os.environ.get('MT2', '1') == '1':
        wait_signal(e)
        e(f'''
        s_sub_u32 s58, {sB}, 80             ; 0..175
        v_lshlrev_b32 v10, 7, v1            ; lane*128
        ''')
        for (sr, lines) in ((S_WO, 6400), (S_W1, 15360), (S_W2, 15360)):
            per = (lines + 175) // 176
            e(f's_mul_i32 s59, s58, {per * 128}')
            for k in range((per + 63) // 64):
                n = min(64, per - 64 * k)
                e(f'''
                v_mov_b32 v12, 0xf0000000
                v_cmp_gt_u32 vcc, {n}, v1
                v_cndmask_b32 v11, v12, v10, vcc
                buffer_load_dword a244, v11, {srd(sr)}, s59 offen offset:0
                s_add_u32 s59, s59, 8192
                ''')
        per = 146
        for k in range(3):
            n = min(64, per - 64 * k)
            e(f'''
            s_mul_i32 s59, s58, {per}
            s_add_u32 s59, s59, {64 * k}
            v_add_u32 v8, s59, v1
            v_mul_u32_u24 v9, 52429, v8
            v_lshrrev_b32 v9, 21, v9
            v_mul_u32_u24 v11, 40, v9
            v_sub_u32 v11, v8, v11
            v_lshlrev_b32 v11, 7, v11
            v_mul_u32_u24 v9, 7680, v9
            v_add_u32 v11, v11, v9
            v_add_u32 v11, 2560, v11
            v_mov_b32 v12, 0xf0000000
            v_cmp_gt_u32 vcc, {n}, v1
            v_cndmask_b32 v11, v12, v11, vcc
            buffer_load_dword a244, v11, {srd(S_WMOD)}, 0 offen
            ''')
        for x in range(0, 25700):
            assert (x * 52429) >> 21 == x // 40 or x * 52429 >= (1 << 32)
    e(f's_branch {LJ}')
    e.label(LD)
    e.assume_settled()
    e.smem_pend.update(['s90', '_smem'])
    import os
    if os.environ.get('MT', '1') == '1':
        e(f'''
        s_mul_i32 s58, {sB}, 9600
        v_lshlrev_b32 v10, 7, v1
        v_add_u32 v11, 8192, v10
        v_mov_b32 v12, 0xf0000000
        v_cmp_gt_u32 vcc, 11, v1
        v_cndmask_b32 v11, v12, v11, vcc
        buffer_load_dword a246, v10, {srd(S_WQKV)}, s58 offen
        buffer_load_dword a247, v11, {srd(S_WQKV)}, s58 offen
        ''')
    code_prefetch(e, None, code_end)
    get_tag(e)
    e(f'''
    s_lshl_b32 s96, {sJ}, 8
    s_cmp_eq_u32 {sJ}, 15
    s_cbranch_scc1 {LJ}
    ''')
    wq_dma_addr(e, 15)
    e(f'''
    s_and_b32 s58, {sI}, 1
    s_add_u32 s58, s58, 256
    s_mul_i32 s58, s58, 3840
    s_add_u32 s58, s58, s96
    v_lshrrev_b32 v10, 1, v1
    v_mul_u32_u24 v10, 7680, v10
    v_and_b32 v11, 1, v1
    v_lshl_add_u32 v10, v11, 7, v10
    ''')
    e.ts(60, True)
    wait_signal(e)
    e.ts(61, True)
    import os
    thr = int(os.environ.get('WTHR', 24))
    n = 0
    for q in range(0, 4):
        for u in range(16):
            e(f'''
            s_mov_b32 m0, {q * 16384 + u * 1024}
            s_add_u32 s57, s96, {(64 * q + 4 * u) * 3840}
            ''')
            e(f'buffer_load_dwordx4 v15, {srd(S_WQKV)}, s57 offen lds')
            n += 1
            if n > thr and n % 4 == 0:
                e.force_wait(vm=thr)
            if os.environ.get('WT', '0') == '1' and u in (5, 11) and q < 3:
                k = 2 * q + (u == 11)
                e(f's_add_u32 s59, s58, {k * 64 * 3840}')
                e(f'buffer_load_dword a246, v10, {srd(S_WQKV)}, s59 offen')
    e.force_wait(vm=14)
    e.ts(62, True)
    e.label(LJ)
    e.assume_settled(14)
    for b in range(300):
        assert (b * 3277) >> 16 == b // 20 or b >= 80
        assert (b * 1639) >> 16 == b // 40 or b >= 160


N_W2, N_W1A, N_W1B, N_WOM, N_WOT = 480, 384, 96, 160, 40
U_W1A = N_W2
U_W1B = U_W1A + N_W1A
U_WOM = U_W1B + N_W1B
U_WOT = U_WOM + N_WOM
U_END = U_WOT + N_WOT
RL_V = 208
RL_S = 64
RL_STAGE = 16384


def divmod_s(e, q, r, x, d, lim):
    m = (65536 + d - 1) // d
    for xx in range(lim):
        assert (xx * m) >> 16 == xx // d, (xx, d)
    e(f'''
    s_mul_i32 {q}, {x}, {m}
    s_lshr_b32 {q}, {q}, 16
    s_mul_i32 {r}, {q}, {d}
    s_sub_u32 {r}, {x}, {r}
    ''')


def relayout_setup(e, rnd):
    V = RL_V + 8 * rnd
    S = RL_S + 8 * rnd
    sU = 's80'
    LW2, LWOM, LWOT, LW1A, LW1B, L16, L32, LNONE, LD = (e.new_label(x) for x in ('RW2', 'RWOM', 'RWOT', 'RW1A', 'RW1B', 'RL16', 'RL32', 'RLN', 'RLD'))
    e(f'''
    s_lshl_b32 {sU}, {sB}, 2
    s_add_u32 {sU}, {sU}, {sW}
    s_add_u32 {sU}, {sU}, {1024 * rnd}
    s_lshl_b32 s81, {sW}, 12
    s_add_u32 s81, s81, {RL_STAGE + 16384 * rnd}
    v_lshrrev_b32 v3, 3, v1            ; jj
    v_and_b32 v4, 7, v1                ; granule
    v_and_b32 v5, 3, v3
    v_lshrrev_b32 v6, 2, v3
    s_cmp_ge_u32 {sU}, {U_END}
    s_cbranch_scc1 {LNONE}
    s_cmp_lt_u32 {sU}, {U_W1A}
    s_cbranch_scc1 {LW2}
    s_cmp_lt_u32 {sU}, {U_W1B}
    s_cbranch_scc1 {LW1A}
    s_cmp_lt_u32 {sU}, {U_WOM}
    s_cbranch_scc1 {LW1B}
    s_cmp_lt_u32 {sU}, {U_WOT}
    s_cbranch_scc1 {LWOM}
    s_branch {LWOT}
    ''')

    def srdcopy(src):
        e(f'''
        s_mov_b32 s{S}, s{src}
        s_mov_b32 s{S + 1}, s{src + 1}
        s_mov_b32 s{S + 2}, s{src + 2}
        s_mov_b32 s{S + 3}, 0x20000
        ''')
    e.label(LW2)
    divmod_s(e, 's82', 's83', sU, 10, 480)
    e(f'''
    v_lshl_add_u32 v7, v6, 3, v5
    s_lshl_b32 s84, s82, 5
    s_mov_b32 s85, 0
    s_mov_b32 s86, 4
    s_mov_b32 s87, 16
    s_mov_b32 s88, 20
    s_mov_b32 s89, {WS_W2F}
    s_mov_b32 s91, 48
    ''')
    srdcopy(S_W2)
    e(f's_branch {L16}')
    e.label(LWOM)
    e(f's_sub_u32 s57, {sU}, {U_WOM}')
    divmod_s(e, 's82', 's83', 's57', 10, 160)
    e(f'''
    v_lshl_add_u32 v7, v6, 3, v5
    s_mul_i32 s84, s82, 40
    s_mov_b32 s85, 0
    s_mov_b32 s86, 4
    s_mov_b32 s87, 20
    s_mov_b32 s88, 24
    s_mov_b32 s89, {WS_WOF}
    s_mov_b32 s91, 20
    ''')
    srdcopy(S_WO)
    e(f's_branch {L16}')
    e.label(LWOT)
    e(f's_sub_u32 s57, {sU}, {U_WOT}')
    divmod_s(e, 's82', 's83', 's57', 10, 40)
    e(f'''
    v_mul_u32_u24 v7, 20, v6
    v_add_u32 v7, v7, v5
    s_mul_i32 s84, s82, 160
    s_add_u32 s82, s82, 16
    s_mov_b32 s85, 16
    s_mov_b32 s86, 56
    s_mov_b32 s87, 96
    s_mov_b32 s88, 136
    s_mov_b32 s89, {WS_WOF}
    s_mov_b32 s91, 20
    ''')
    srdcopy(S_WO)
    e.label(L16)
    e(f'''
    v_mul_u32_u24 v7, 1280, v7
    v_lshl_add_u32 v7, v4, 4, v7
    s_lshl_b32 s58, s83, 7
    ''')
    for u in range(4):
        e(f'''
        s_add_u32 s57, s84, s{85 + u}
        s_mul_i32 s57, s57, 1280
        s_add_u32 s57, s57, s58
        v_add_u32 v{V + u}, s57, v7
        ''')
    e(f'''
    v_lshrrev_b32 v8, 4, v1            ; g
    v_bfe_u32 v9, v1, 2, 2             ; r
    v_lshl_add_u32 v8, v8, 3, v9
    v_lshlrev_b32 v8, 7, v8
    v_and_b32 v9, 3, v1
    v_lshl_add_u32 v8, v9, 3, v8
    v_add_u32 v8, s81, v8
    ''')
    for q in range(4):
        e(f'v_add_u32 v{V + 4 + q}, {32 * q}, v8')
        e(f's_lshl_b32 s58, s83, 2\n s_add_u32 s58, s58, {q}')
        divmod_s(e, 's59', 's60', 's58', 5, 40)
        e(f'''
        s_mul_i32 s59, s59, s91
        s_add_u32 s59, s59, s82
        s_mul_i32 s59, s59, 5
        s_add_u32 s59, s59, s60
        s_lshl_b32 s59, s59, 10
        s_add_u32 s{S + 4 + q}, s59, s89
        ''')
    e(f's_branch {LD}')
    e.label(LW1A)
    e(f's_sub_u32 s57, {sU}, {U_W1A}')
    divmod_s(e, 's58', 's59', 's57', 24, 384)
    e(f'''
    s_lshr_b32 s60, s58, 1             ; cs
    s_and_b32 s58, s58, 1              ; hf
    v_lshl_add_u32 v7, v6, 4, v5
    s_mul_i32 s84, s60, 80
    s_lshl_b32 s63, s58, 5
    s_add_u32 s84, s84, s63
    s_mov_b32 s85, 0
    s_mov_b32 s86, 4
    s_mov_b32 s87, 8
    s_mov_b32 s88, 12
    s_lshl_b32 s82, s59, 7
    s_mov_b32 s83, s82
    s_mul_i32 s89, s60, 5
    s_lshl_b32 s63, s58, 1
    s_add_u32 s89, s89, s63
    s_add_u32 s91, s89, 1
    s_lshl_b32 s61, s59, 1
    s_mov_b32 s62, s61
    s_branch {L32}
    ''')
    e.label(LW1B)
    e(f's_sub_u32 s57, {sU}, {U_W1B}')
    divmod_s(e, 's60', 's59', 's57', 12, 96)
    e(f'''
    v_mov_b32 v7, v3
    s_mul_i32 s84, s60, 80
    s_add_u32 s84, s84, 64
    s_mov_b32 s85, 0
    s_mov_b32 s86, 8
    s_mov_b32 s87, 0
    s_mov_b32 s88, 8
    s_lshl_b32 s82, s59, 8
    s_add_u32 s83, s82, 128
    s_mul_i32 s89, s60, 5
    s_add_u32 s89, s89, 4
    s_mov_b32 s91, s89
    s_lshl_b32 s61, s59, 2
    s_add_u32 s62, s61, 2
    ''')
    e.label(L32)
    srdcopy(S_W1)
    e(f'''
    v_mul_u32_u24 v7, 3072, v7
    v_lshl_add_u32 v7, v4, 4, v7
    ''')
    for u in range(4):
        col = 's82' if u < 2 else 's83'
        e(f'''
        s_add_u32 s57, s84, s{85 + u}
        s_mul_i32 s57, s57, 3072
        s_add_u32 s57, s57, {col}
        v_add_u32 v{V + u}, s57, v7
        ''')
    e(f'''
    v_lshrrev_b32 v8, 5, v1            ; h
    v_bfe_u32 v9, v1, 2, 2             ; r
    v_lshl_add_u32 v8, v8, 3, v9
    v_lshlrev_b32 v8, 7, v8
    v_bfe_u32 v9, v1, 4, 1
    v_lshl_add_u32 v8, v9, 5, v8
    v_and_b32 v9, 3, v1
    v_lshl_add_u32 v8, v9, 3, v8
    v_add_u32 v8, s81, v8
    ''')
    for sg in range(2):
        for q in range(2):
            k = 2 * sg + q
            ft = 's61' if sg == 0 else 's62'
            st = 's89' if sg == 0 else 's91'
            e(f'''
            v_add_u32 v{V + 4 + k}, {2048 * sg + 64 * q}, v8
            s_add_u32 s57, {ft}, {q}
            s_mul_i32 s57, s57, 40
            s_add_u32 s57, s57, {st}
            s_lshl_b32 s57, s57, 10
            s_add_u32 s{S + 4 + k}, s57, {WS_W1F}
            ''')
    e(f's_branch {LD}')
    e.label(LNONE)
    srdcopy(S_W1)
    for u in range(4):
        e(f'''
        v_mov_b32 v{V + u}, 0xf0000000
        v_add_u32 v{V + 4 + u}, s81, v2
        s_mov_b32 s{S + 4 + u}, 0x7ffff000
        ''')
    e.label(LD)


def relayout_issue_list(rnd, wave_stage_sgpr):
    V = RL_V + 8 * rnd
    S = RL_S + 8 * rnd
    out = []
    for u in range(4):
        out.append(f's_add_u32 m0, {wave_stage_sgpr}, {RL_STAGE + 16384 * rnd + 1024 * u}')
        out.append(f'buffer_load_dwordx4 v{V + u}, s[{S}:{S + 3}], 0 offen lds')
    return out


def relayout_read_list(rnd, R):
    V = RL_V + 8 * rnd
    out = []
    for k in range(4):
        out.append(f'ds_read_b64_tr_b16 {v2(R + 4 * k)}, v{V + 4 + k}')
        out.append(f'ds_read_b64_tr_b16 {v2(R + 4 * k + 2)}, v{V + 4 + k} offset:512')
    return out


def relayout_store_list(rnd, R):
    S = RL_S + 8 * rnd
    return [f'buffer_store_dwordx4 {v4(R + 4 * k)}, v2, {srd(S_WS)}, s{S + 4 + k} offen sc1' for k in range(4)]


def second_unit_branch(e, label):
    e(f'''
    s_lshl_b32 s57, {sB}, 2
    s_add_u32 s57, s57, {sW}
    s_cmp_ge_u32 s57, {U_END - 1024}
    s_cbranch_scc1 {label}
    ''')


def publish_flag(e, base, idx_sgpr, shift=7):
    lbl = e.new_label('PF')
    e(f'''
    s_cmp_lg_u32 {sW}, 0
    s_cbranch_scc1 {lbl}
    s_lshl_b32 s57, {idx_sgpr}, {shift}
    s_add_u32 s57, s57, {base}
    v_mov_b32 v3, {sTAG}
    v_mov_b32 v4, 0
    s_mov_b64 exec, 1
    ''')
    e.raw(f'buffer_store_dword v3, v4, {srd(S_WS)}, s57 offen sc1')
    e.raw('s_nop 1')
    e('s_mov_b64 exec, -1')
    e.label(lbl)


def poll_loop(e, voff, nregs, scratch=None):
    lp = e.new_label('POLL')
    dn = e.new_label('POLLD')
    e('s_mov_b32 s57, 0')
    sc = voff + nregs if scratch is None else scratch
    e.label(lp)
    for k in range(nregs):
        e.raw(f'buffer_load_dword v{sc + k}, v{voff + k}, {srd(S_WS)}, 0 offen sc1')
    e.raw('s_waitcnt vmcnt(0)')
    e.raw(f'v_cmp_ne_u32 vcc, {sTAG}, v{sc}')
    for k in range(1, nregs):
        e.raw(f'v_cmp_ne_u32 s[58:59], {sTAG}, v{sc + k}')
        e.raw('s_nop 0')
        e.raw('s_or_b64 vcc, vcc, s[58:59]')
    e.raw('s_add_u32 s57, s57, 1')
    e.raw(f's_cmp_gt_u32 s57, {SPIN_MAX}')
    e.raw(f's_cbranch_scc1 {dn}')
    e.raw(f's_cbranch_vccnz {lp}')
    e.label(dn)


def poll_flags(e, voff, nregs=1):
    sk = e.new_label('POLLS')
    e(f'''
    s_cmp_lg_u32 {sW}, 0
    s_cbranch_scc1 {sk}
    ''')
    poll_loop(e, voff, nregs)
    e.label(sk)
    e('s_barrier')
```

```python
from common import *
from p0 import *

NSLOT = 9
MV = LDS_MISC
MV_FLAG = MV + 14336
CST2 = MV + 4096
LGP = MV + 5120
QSCALE = LOG2E / (20 ** 0.5)
A_LG = 96
sINV = 's6'


def bf16_round4(e, R):
    for h in range(2):
        e(f'v_cvt_pk_bf16_f32 v{R + 4 + h}, v{R + 2 * h}, v{R + 2 * h + 1}')
    for h in range(2):
        e(f'v_lshlrev_b32 v{R + 2 * h}, 16, v{R + 4 + h}')
        e(f'v_and_b32 v{R + 2 * h + 1}, 0xffff0000, v{R + 4 + h}')


def sum4(e, R):
    for h in range(2):
        e(f'v_pk_add_f32 {v2(R + 2 * h)}, {v2(R + 2 * h)}, {v2(R + 4 + 2 * h)}')
        e(f'v_pk_add_f32 {v2(R + 8 + 2 * h)}, {v2(R + 8 + 2 * h)}, {v2(R + 12 + 2 * h)}')
    for h in range(2):
        e(f'v_pk_add_f32 {v2(R + 2 * h)}, {v2(R + 2 * h)}, {v2(R + 8 + 2 * h)}')


def sync_a(e):
    e(f'''
    s_lshl_b32 s57, {sI}, 5
    v_add_u32 v3, s57, v1
    v_lshlrev_b32 v3, 7, v3
    v_add_u32 v3, {FL_XN}, v3
    v_subrev_u32 v4, 32, v1
    v_lshlrev_b32 v4, 7, v4
    v_add_u32 v4, {FL_MOD}, v4
    v_cmp_gt_u32 vcc, 32, v1
    v_cndmask_b32 v8, v4, v3, vcc
    v_add_u32 v4, 32, v1
    v_min_u32 v4, 79, v4
    v_lshlrev_b32 v4, 7, v4
    v_add_u32 v9, {FL_MOD}, v4
    ''')
    poll_flags(e, 8, 2)


def publish_p1(e):
    lbl = e.new_label('PF')
    e(f'''
    s_cmp_lg_u32 {sW}, 0
    s_cbranch_scc1 {lbl}
    s_lshl_b32 s57, {sI}, 4
    s_add_u32 s57, s57, {sJ}
    s_lshl_b32 s57, s57, 7
    s_add_u32 s57, s57, {FL_QKV}
    s_lshl_b32 s58, {sB}, 2
    s_add_u32 s58, s58, {FL_REL}
    v_mov_b32 v3, {sTAG}
    v_mov_b32 v4, 0
    s_mov_b64 exec, 1
    ''')
    e.raw(f'buffer_store_dword v3, v4, {srd(S_WS)}, s57 offen sc1')
    e.raw(f'buffer_store_dword v3, v4, {srd(S_WS)}, s58 offen sc1')
    e.raw('s_nop 1')
    e('s_mov_b64 exec, -1')
    e.label(lbl)
    e.maybe_vm(2)


V_LG, V_LC = 234, 235


def late_setup(e):
    e(f'''
    s_mul_i32 s57, {sB}, 1639
    s_lshr_b32 s57, s57, 16            ; ks
    s_mul_i32 s58, s57, 40
    s_sub_u32 s58, {sB}, s58
    s_add_u32 s58, s58, 20             ; cg
    s_mul_i32 s59, s57, 160
    s_mul_i32 s60, {sW}, 40
    s_add_u32 s59, s59, s60
    s_lshl_b32 s5, s59, 1
    s_mul_i32 s4, s59, 7680
    s_lshl_b32 s60, s58, 7
    s_add_u32 s4, s4, s60
    s_mul_i32 s3, s57, 15360
    s_lshl_b32 s60, s58, 8
    s_add_u32 s3, s3, s60
    s_add_u32 s3, s3, {WS_MODP}
    s_cmp_lt_u32 {sB}, 160
    s_cselect_b32 s60, 0, 0xf0000000
    s_cselect_b32 s3, s3, 0x7ffff000
    v_lshrrev_b32 v3, 3, v1
    v_and_b32 v4, 7, v1
    v_mul_u32_u24 v5, 7680, v3
    v_lshl_add_u32 v5, v4, 4, v5
    v_or_b32 v{V_LG}, s60, v5
    v_min_u32 v5, 39, v1
    v_lshlrev_b32 v5, 1, v5
    v_or_b32 v{V_LC}, s60, v5
    ''')


def late_loads():
    out = [f'buffer_load_ushort a{A_LG + 20}, v{V_LC}, {srd(S_C)}, s5 offen']
    for u in range(5):
        out.append(f's_add_u32 s57, s4, {u * 61440}')
        out.append(f'buffer_load_dwordx4 {a4(A_LG + 4 * u)}, v{V_LG}, {srd(S_WMOD)}, s57 offen')
    return out


def late_compute(e):
    WR, T, SV, ACC = 16, 40, 44, 8
    e(f'v_accvgpr_read_b32 v{T}, a{A_LG + 20}')
    e(f'''
    v_lshlrev_b32 v{T}, 16, v{T}
    v_mul_f32 v{T + 1}, {hexf(-LOG2E)}, v{T}
    v_exp_f32 v{T + 1}, v{T + 1}
    v_add_f32 v{T + 1}, 1.0, v{T + 1}
    v_rcp_f32 v{T + 1}, v{T + 1}
    v_mul_f32 v{T + 1}, v{T}, v{T + 1}
    v_cvt_pk_bf16_f32 v{T + 1}, v{T + 1}, v{T + 1}
    v_lshlrev_b32 v{T + 1}, 16, v{T + 1}
    s_mul_i32 s57, {sW}, 160
    s_add_u32 s57, s57, {CST2}
    v_min_u32 v5, 39, v1
    v_lshlrev_b32 v5, 2, v5
    v_add_u32 v5, s57, v5
    ds_write_b32 v5, v{T + 1}
    v_lshrrev_b32 v3, 3, v1
    v_lshlrev_b32 v5, 2, v3
    v_add_u32 v5, s57, v5
    ''')
    for k in range(20):
        e(f'v_accvgpr_read_b32 v{WR + k}, a{A_LG + k}')
    e.wait(lg=0)
    for u in range(5):
        e(f'ds_read_b32 v{SV + 2 * u}, v5 offset:{32 * u}')
    for u in range(5):
        for d in range(4):
            t = 56 + 2 * (d & 1) + 4 * (u & 1)
            e(f'v_lshlrev_b32 v{t}, 16, v{WR + 4 * u + d}')
            e(f'v_and_b32 v{t + 1}, 0xffff0000, v{WR + 4 * u + d}')
            if u == 0:
                e(f'v_pk_mul_f32 {v2(ACC + 2 * d)}, {v2(t)}, {v2(SV)} op_sel_hi:[1,0]')
            else:
                e(f'v_pk_fma_f32 {v2(ACC + 2 * d)}, {v2(t)}, {v2(SV + 2 * u)}, {v2(ACC + 2 * d)} op_sel_hi:[1,0,1]')
    for k in range(8):
        e(f'v_add_f32_dpp v{ACC + k}, v{ACC + k}, v{ACC + k} row_ror:8 row_mask:0xf bank_mask:0xf')
    for swp in ('v_permlane16_swap_b32', 'v_permlane32_swap_b32'):
        for k in range(8):
            e(f'v_mov_b32 v{20 + k}, v{ACC + k}')
        for k in range(8):
            e(f'{swp} v{ACC + k}, v{20 + k}')
        for k in range(8):
            e(f'v_add_f32 v{ACC + k}, v{ACC + k}, v{20 + k}')
    e(f'''
    s_lshl_b32 s57, {sW}, 8
    s_add_u32 s57, s57, {LGP}
    v_and_b32 v5, 7, v1
    v_lshlrev_b32 v5, 5, v5
    v_add_u32 v5, s57, v5
    ds_write_b128 v5, v[8:11]
    ds_write_b128 v5, v[12:15] offset:16
    ''')
    e.wait(lg=0)


def late_store(e):
    lbl = e.new_label('LS')
    e(f'''
    s_cmp_lg_u32 {sW}, 3
    s_cbranch_scc1 {lbl}
    v_lshlrev_b32 v5, 2, v1
    v_add_u32 v6, {LGP}, v5
    ''')
    for p in range(4):
        e.raw(f'ds_read_b32 v{16 + p}, v6 offset:{256 * p}')
    e.raw('s_waitcnt lgkmcnt(0)')
    e.raw('v_add_f32 v16, v16, v17')
    e.raw('v_add_f32 v18, v18, v19')
    e.raw('v_add_f32 v16, v16, v18')
    e.raw(f'buffer_store_dword v16, v5, {srd(S_WS)}, s3 offen sc1')
    e.label(lbl)
    e.maybe_vm(1)


def range_bits(e, R, dst):
    e(f'''
    v_max3_f32 v{R + 4}, |v{R}|, |v{R + 1}|, |v{R + 2}|
    v_max_f32 v{R + 4}, v{R + 4}, |v{R + 3}|
    v_mov_b32 v{R + 5}, 0x47000000
    v_cmp_nle_f32 vcc, v{R + 4}, v{R + 5}
    s_cmp_lg_u64 vcc, 0
    s_cselect_b32 {dst}, 1, 0
    v_mov_b32 v{R + 5}, 0x3b800000
    v_cmp_ge_f32 vcc, v{R + 4}, v{R + 5}
    s_cmp_lg_u64 vcc, 0
    s_cselect_b32 s59, 2, 0
    s_or_b32 {dst}, {dst}, s59
    ''')


def rescale_cold(e, R0, R1, back):
    lbl = e.new_label('RSC')
    c = e.cold
    c.append(lbl + ':')

    def o(t):
        for x in t.strip().split('\n'):
            c.append('    ' + x.strip())
    o(f'''
    v_max3_f32 v3, |v{R0}|, |v{R0 + 1}|, |v{R0 + 2}|
    v_max_f32 v3, v3, |v{R0 + 3}|
    s_cmp_lg_u32 {sW}, 0
    s_cbranch_scc1 {lbl}_a
    v_max3_f32 v4, |v{R1}|, |v{R1 + 1}|, |v{R1 + 2}|
    v_max3_f32 v3, v3, v4, |v{R1 + 3}|
    ''')
    c.append(f'{lbl}_a:')
    for n in (8, 4, 2, 1):
        o(f's_nop 1\n v_max_f32_dpp v3, v3, v3 row_ror:{n} row_mask:0xf bank_mask:0xf')
    for swp in ('v_permlane16_swap_b32', 'v_permlane32_swap_b32'):
        o(f's_nop 1\n v_mov_b32 v4, v3\n s_nop 1\n {swp} v3, v4\n s_nop 1\n v_max_f32 v3, v3, v4')
    o(f'''
    s_lshl_b32 s57, {sW}, 2
    s_add_u32 s57, s57, {MV_FLAG + 16}
    v_mov_b32 v4, s57
    ds_write_b32 v4, v3
    s_waitcnt lgkmcnt(0)
    s_barrier
    v_mov_b32 v4, {MV_FLAG + 16}
    ds_read_b128 v[8:11], v4
    s_waitcnt lgkmcnt(0)
    v_max3_f32 v3, v8, v9, v10
    v_max_f32 v3, v3, v11
    s_nop 1
    v_readfirstlane_b32 s57, v3
    s_nop 3
    s_lshr_b32 s57, s57, 23
    s_and_b32 s57, s57, 0xff
    s_sub_i32 s57, 267, s57            ; 127 + (13 - (e - 127))
    s_max_i32 s57, s57, 27
    s_min_i32 s57, s57, 227
    s_sub_i32 s58, 254, s57
    s_lshl_b32 s57, s57, 23
    s_lshl_b32 {sINV}, s58, 23
    ''')
    for R, V in ((R0, 12), (R1, 13)):
        if R == R1:
            o(f's_cmp_lg_u32 {sW}, 0\n s_cbranch_scc1 {lbl}_b')
        for k in range(4):
            o(f'v_mul_f32 v{R + k}, s57, v{R + k}')
        o(f'''v_cvt_pk_f16_f32 v{R + 4}, v{R}, v{R + 1}
        v_cvt_pk_f16_f32 v{R + 5}, v{R + 2}, v{R + 3}
        ds_write_b64 v{V}, v[{R + 4}:{R + 5}]''')
    c.append(f'{lbl}_b:')
    o(f's_waitcnt lgkmcnt(0)\n s_barrier\n s_branch {back}')
    return lbl


def p1_tile(e):
    NR = 12
    XB = 16
    ACC = 64
    GS = [128, 136]
    WA = [160, 176]
    RLR = 192
    T = 224
    vTA = [228, 229, 230, 231]
    vG, vD = 232, 233
    R0, R1 = 128, 144
    e(f'''
    v_lshrrev_b32 v8, 5, v1            ; h
    v_bfe_u32 v9, v1, 2, 2             ; r
    v_lshl_add_u32 v5, v8, 3, v9       ; 8h + r
    v_lshlrev_b32 v5, 8, v5            ; row*256
    v_and_b32 v6, 1, v1
    v_lshl_add_u32 v5, v6, 3, v5       ; + sub*8
    v_bfe_u32 v6, v1, 4, 1             ; nhalf
    v_bfe_u32 v7, v1, 1, 1             ; cpiece>>1
    v_lshl_add_u32 v6, v6, 1, v7
    v_lshl_add_u32 v6, v9, 2, v6
    ''')
    for tau in range(4):
        e(f'''
        v_add_u32 v7, {4 * tau}, v6
        v_and_b32 v7, 15, v7
        v_lshl_add_u32 v{vTA[tau]}, v7, 4, v5
        ''')
    e(f'''
    v_lshlrev_b32 v{vG}, 4, v8
    v_add_u32 v{vG}, {MV}, v{vG}
    s_cmp_lt_u32 {sJ}, 5
    s_cselect_b32 s62, {hexf(QSCALE)}, 1.0
    s_mov_b32 s63, s62
    s_lshl_b32 s96, {sJ}, 8
    s_mul_i32 s58, {sW}, {16 * 3840}
    s_add_u32 s96, s96, s58
    s_lshl_b32 s97, {sW}, 12
    s_lshl_b32 s98, {sI}, 2
    s_add_u32 s98, s98, {sW}
    s_mul_i32 s98, s98, 40960
    s_add_u32 s98, s98, {WS_XN}
    s_mov_b32 {sINV}, 1.0
    ''')
    wq_dma_addr(e, vD)
    e(f'''
    v_lshlrev_b32 v236, 4, v0
    v_add_u32 v237, 4096, v236
    v_lshlrev_b32 v12, 3, v0
    v_add_u32 v13, {MV + 1280}, v12
    v_add_u32 v14, {MV - 1280}, v12
    v_cmp_le_u32 vcc, 160, v0
    v_cndmask_b32 v15, 0, 1.0, vcc
    v_cndmask_b32 v4, v13, v14, vcc
    v_add_u32 v13, {MV + 96 * 8}, v12
    v_mov_b32 v12, v4
    v_mov_b32 v3, {MV_FLAG}
    v_mov_b32 v4, 0
    ds_write_b32 v3, v4
    ''')
    e.wait(lg=0)
    e(f'''
    s_lshl_b32 s57, {sI}, 2
    s_mul_i32 s57, s57, 40960
    s_mul_i32 s58, {sJ}, 10240
    s_add_u32 s99, s57, s58
    s_mul_i32 s58, {sW}, 2560
    s_add_u32 s99, s99, s58
    s_add_u32 s99, s99, {WS_XN}
    v_lshlrev_b32 v238, 7, v1
    v_mov_b32 v5, 0xf0000000
    v_cmp_gt_u32 vcc, 20, v1
    v_cndmask_b32 v238, v5, v238, vcc
    ''')
    sync_a(e)
    e.ts(2)
    import os
    if os.environ.get('XT', '0') == '1':
        e(f'buffer_load_dword a245, v238, {srd(S_WS)}, s99 offen sc1')
    for p in range(4):
        e(f's_mov_b32 s57, {WS_MODP + p * 15360}')
        e(f'buffer_load_dwordx4 {v4(R0 + 4 * p)}, v236, {srd(S_WS)}, s57 offen sc1')
    LA, LB = e.new_label('MVA'), e.new_label('MVB')
    e(f's_cmp_lg_u32 {sW}, 0\n s_cbranch_scc1 {LA}')
    for p in range(4):
        e.raw(f's_mov_b32 s57, {WS_MODP + p * 15360}')
        e.raw(f'buffer_load_dwordx4 {v4(R1 + 4 * p)}, v237, {srd(S_WS)}, s57 offen sc1')
    e.label(LA)
    e.maybe_vm(4)

    def xload(s):
        out = []
        if s and s % 4 == 0:
            out.append('s_add_u32 s98, s98, 4096')
        out.append(f'buffer_load_dwordx4 {v4(XB + 4 * (s % NR))}, v2, {srd(S_WS)}, s98 offen offset:{(s % 4) * 1024} sc1')
        return out
    for s in range(6):
        for x in xload(s):
            e(x)

    def finish_vec(R, one):
        sum4(e, R)
        bf16_round4(e, R)
        for k in range(4):
            e(f'v_add_f32 v{R + k}, {one}, v{R + k}')
        bf16_round4(e, R)
        for k in range(4):
            e(f'v_mul_f32 v{R + k}, s62, v{R + k}')
    finish_vec(R0, 'v15')
    range_bits(e, R0, 's60')
    e(f'''
    v_cvt_pk_f16_f32 v{R0 + 4}, v{R0}, v{R0 + 1}
    v_cvt_pk_f16_f32 v{R0 + 5}, v{R0 + 2}, v{R0 + 3}
    ds_write_b64 v12, {v2(R0 + 4)}
    s_cmp_lg_u32 {sW}, 0
    s_cbranch_scc1 {LB}
    ''')
    finish_vec(R1, '1.0')
    range_bits(e, R1, 's61')
    e(f'''
    s_or_b32 s60, s60, s61
    v_cvt_pk_f16_f32 v{R1 + 4}, v{R1}, v{R1 + 1}
    v_cvt_pk_f16_f32 v{R1 + 5}, v{R1 + 2}, v{R1 + 3}
    ''')
    e.raw(f'ds_write_b64 v13, {v2(R1 + 4)}')
    e.label(LB)
    e(f'v_mov_b32 v3, {MV_FLAG}\n v_mov_b32 v4, s60')
    e('s_mov_b64 exec, 1')
    e.raw('ds_or_b32 v3, v4')
    e('s_mov_b64 exec, -1')
    for s in range(6, NR):
        for x in xload(s):
            e(x)
    e.force_wait(lg=0)
    e('s_barrier')
    back = e.new_label('RSB')
    e(f'ds_read_b32 v4, v3')
    cold = rescale_cold(e, R0, R1, back)
    e(f'v_readfirstlane_b32 s57, v4')
    e(f's_cmp_lg_u32 s57, 2\n s_cbranch_scc1 {cold}')
    e.label(back)
    e.ts(9)

    def tr_reads(s):
        out = []
        q, sl = s >> 2, s & 3
        slot = q % NSLOT
        for tau in range(4):
            for ee in range(2):
                off = (slot * 16384) % 65536 + (16 * sl + 4 * ee) * 256
                out.append(f'ds_read_b64_tr_b16 {v2(WA[s & 1] + 4 * tau + 2 * ee)}, v{vTA[tau]} offset:{off}')
        return out

    def addr_fix(s):
        q = s >> 2
        if s & 3 or s == 0:
            return []
        slot, prev = q % NSLOT, (q - 1) % NSLOT
        d = (slot * 16384) // 65536 - (prev * 16384) // 65536
        if d == 0:
            return []
        return [f'v_add_u32 v{vTA[t]}, {hex((d * 65536) & 0xffffffff)}, v{vTA[t]}' for t in range(4)]

    def gs_reads(s):
        b = GS[s & 1]
        return [f'ds_read_b128 {v4(b)}, v{vG} offset:{32 * s}',
                f'ds_read_b128 {v4(b + 4)}, v{vG} offset:{1280 + 32 * s}']

    def modulate(s):
        b = GS[s & 1]
        out = []
        for d in range(4):
            x = XB + 4 * (s % NR) + d
            t = T + 2 * (d & 1)
            out.append(f'v_fma_mix_f32 v{t}, v{x}, v{b + d}, v{b + 4 + d} op_sel:[0,0,0] op_sel_hi:[1,1,1]')
            out.append(f'v_fma_mix_f32 v{t + 1}, v{x}, v{b + d}, v{b + 4 + d} op_sel:[1,1,1] op_sel_hi:[1,1,1]')
            out.append(f'v_cvt_pk_bf16_f32 v{x}, v{t}, v{t + 1}')
        return out

    def wdma(q, u):
        slot = q % NSLOT
        return [f's_add_u32 m0, s97, {slot * 16384 + u * 1024}',
                f's_add_u32 s57, s96, {(64 * q + 4 * u) * 3840}',
                f'buffer_load_dwordx4 v{vD}, {srd(S_WQKV)}, s57 offen lds']

    for x in gs_reads(0) + tr_reads(0) + gs_reads(1) + modulate(0):
        e(x)
    extra = {}
    wtok = {}
    lates = late_loads()
    extra[24] = lates[:3]
    extra[25] = lates[3:5]
    extra[26] = lates[5:7]
    extra[27] = lates[7:9]
    extra[28] = lates[9:]
    for s in range(40):
        tr = (addr_fix(s + 1) + tr_reads(s + 1)) if s + 1 < 40 else []
        mod = modulate(s + 1) if s + 1 < 40 else []
        gs = gs_reads(s + 2) if s + 2 < 40 else []
        ex = extra.pop(s, [])
        parts = [gs + tr[:3], tr[3:], mod[:6] + ex, mod[6:]]
        if s + 1 < 40 and len(tr) > 8:
            parts = [tr[:len(tr) - 8] + gs + tr[len(tr) - 8:len(tr) - 5], tr[len(tr) - 5:], mod[:6] + ex, mod[6:]]
        e.wait(lg=0)
        for tau in range(4):
            c = '0' if s == 0 else vr(ACC + 16 * tau, 16)
            e(f'v_mfma_f32_32x32x16_bf16 {vr(ACC + 16 * tau, 16)}, {v4(WA[s & 1] + 4 * tau)}, {v4(XB + 4 * (s % NR))}, {c}')
            for x in parts[tau]:
                e(x)
            if tau == 2 and s < 24:
                q = 4 + s // 4
                for x in wdma(q, s % 4):
                    e(x)
                wtok[q] = e.vm_token()
        if s + NR < 40:
            for x in xload(s + NR):
                e(x)
        if s in (1, 9, 19, 29):
            e.ts(32 + (s + 1) // 10)
        if s % 4 == 2 and 4 <= (s + 2) // 4 <= 9:
            q = (s + 2) // 4
            e.wait_vm_tok(wtok[q])
            if q == 4:
                e.wait(lg=0)
            e('s_barrier')
            if q == 4:
                extra.setdefault(15, []).extend(relayout_issue_list(0, 's97'))
        if s == 17:
            lbl = e.new_label('RL1')
            second_unit_branch(e, lbl)
            for x in relayout_issue_list(1, 's97'):
                i = e.raw(x)
                if x.startswith('s_add_u32 m0'):
                    e.raw('s_nop 0').ws = 0
                i.ws = 0
            e.label(lbl)
            e.maybe_vm(4)
        if s == 31:
            extra[32] = relayout_read_list(0, RLR)
            extra[34] = relayout_store_list(0, RLR)
        if s == 36:
            lbl = e.new_label('RL2')
            second_unit_branch(e, lbl)
            for x in relayout_read_list(1, RLR):
                e.raw(x).ws = 0
            e.raw('s_waitcnt lgkmcnt(0)').ws = 0
            for x in relayout_store_list(1, RLR):
                e.raw(x).ws = 0
            e.label(lbl)
            e.maybe_vm(4)
            e.force_wait(lg=0)
    e.ts(10)
    e(f'''
    s_lshl_b32 s57, {sJ}, 19           ; quad m0 = 8c ; *65536
    s_lshl_b32 s62, {sI}, 7
    s_lshl_b32 s63, {sW}, 5
    s_add_u32 s62, s62, s63
    s_lshl_b32 s62, s62, 4
    s_add_u32 s57, s57, s62
    s_add_u32 s57, s57, {WS_QKV}
    v_lshrrev_b32 v3, 5, v1
    v_lshlrev_b32 v3, 15, v3
    v_and_b32 v4, 31, v1
    v_lshl_add_u32 v3, v4, 4, v3
    ''')
    us, usb = e.new_label('US'), e.new_label('USB')
    from p2 import pad_for
    pad_for(e, f'v_mov_b32 v{ACC + 63}, 0')
    e(f's_cmp_lg_u32 {sINV}, 1.0\n s_cbranch_scc1 {us}')
    e.label(usb)
    e.cold.append(us + ':')
    for k in range(64):
        e.cold.append(f'    v_mul_f32 v{ACC + k}, {sINV}, v{ACC + k}')
    e.cold.append(f'    s_branch {usb}')
    for tau in range(4):
        for e2 in range(2):
            R = 16 + 4 * (2 * tau + e2)
            A = ACC + 16 * tau + 8 * e2
            for k in range(4):
                e(f'v_cvt_pk_bf16_f32 v{R + k}, v{A + 2 * k}, v{A + 2 * k + 1}')
            e(f'buffer_store_dwordx4 {v4(R)}, v3, {srd(S_WS)}, s57 offen sc1')
            e('s_add_u32 s57, s57, 65536')
    e.force_wait(vm=0, lg=0)
    e('s_barrier')
    publish_p1(e)


def p1_all(e):
    for rnd in range(2):
        relayout_setup(e, rnd)
    late_setup(e)
    e.ts(1)
    LSK, LD = e.new_label('P1SK'), e.new_label('P1D')
    e(f's_cmp_eq_u32 {sJ}, 15\n s_cbranch_scc1 {LSK}')
    p1_tile(e)
    e(f's_branch {LD}')
    e.label(LSK)
    e.assume_settled(14)
    e(f's_lshl_b32 s97, {sW}, 12')
    for rnd in range(2):
        for x in relayout_issue_list(rnd, 's97'):
            e(x)
    for x in late_loads():
        e(x)
    e.force_wait(vm=0)
    for rnd in range(2):
        for x in relayout_read_list(rnd, 16 + 16 * rnd):
            e(x)
    for rnd in range(2):
        for x in relayout_store_list(rnd, 16 + 16 * rnd):
            e(x)
    e.force_wait(vm=0, lg=0)
    e('s_barrier')
    publish_p1(e)
    e.label(LD)
    e.assume_settled(2)
    late_compute(e)
```

```python
from common import *
from p0 import *
from emit import Ins

KB = 0
KS = 6144
VB = 36864
VS = 6208
OB = VB + 6 * VS + 64
NEG = -1.0e30

SB = 16
QF = 160
QM = 172
KF = 188
VF = 204
MK = 220
OA = 228
vK, vVA, vVB, vY = 244, 245, 246, 247
vM, vT0, vT1, vT2 = 248, 249, 250, 251
OUTA = 0


def p2_pre(e):
    e(f'''
    s_mul_i32 s60, {sJ}, 5
    s_lshr_b32 s60, s60, 1             ; m0
    s_and_b32 s61, {sJ}, 1
    s_lshl_b32 s61, s61, 1             ; o
    ''')
    e(f'''
    v_mov_b32 v8, 0x3f80
    v_mov_b32 v9, 0
    v_mov_b32 v10, 0
    v_mov_b32 v11, 0
    v_lshlrev_b32 v3, 4, v0
    v_add_u32 v3, {OB}, v3
    ds_write_b128 v3, v[8:11]
    v_and_b32 v4, 127, v0
    v_lshlrev_b32 v4, 4, v4
    v_add_u32 v4, {OB + 4096}, v4
    ds_write_b128 v4, v[8:11]
    ''')
    p2_lane_setup(e)
    e(f'''
    s_lshl_b32 s57, {sI}, 7
    s_lshl_b32 s58, {sW}, 5
    s_add_u32 s57, s57, s58
    s_lshl_b32 s57, s57, 4
    s_lshl_b32 s58, s60, 16
    s_add_u32 s57, s57, s58
    s_add_u32 s98, s57, {WS_QKV}
    v_lshrrev_b32 v3, 5, v1            ; h
    v_and_b32 v4, 31, v1               ; t
    v_lshlrev_b32 v5, 15, v3
    v_lshl_add_u32 v13, v4, 4, v5
    s_add_u32 s57, {sI}, {sW}
    s_cmp_ge_u32 s57, 2
    s_cselect_b32 s58, 0, 0xf0000000
    v_or_b32 v12, s58, v2
    s_add_u32 s99, s60, 40
    s_lshl_b32 s99, s99, 16             ; quad (40+m0) * 65536
    s_lshl_b32 s63, s57, 11             ; 128*(i+w)*16
    s_add_u32 s99, s99, s63
    s_add_u32 s99, s99, {WS_QKV - 4096}
    ''')
    e(f'''
    s_lshl_b32 s62, {sI}, 3
    s_lshl_b32 s63, {sW}, 1
    s_add_u32 s62, s62, s63
    s_mul_i32 s62, s62, 20480
    s_add_u32 s62, s62, {WS_OF}
    s_lshl_b32 s63, {sJ}, 10
    s_add_u32 s96, s62, s63
    s_lshr_b32 s63, {sJ}, 2
    s_add_u32 s63, s63, 16
    s_lshl_b32 s63, s63, 10
    s_add_u32 s97, s62, s63
    s_and_b32 s63, {sJ}, 3
    s_lshl_b32 s63, s63, 8
    s_add_u32 s97, s97, s63
    v_bfe_u32 v3, v1, 4, 1
    v_mul_u32_u24 v3, 20480, v3
    v_and_b32 v4, 15, v1
    v_lshl_add_u32 v3, v4, 4, v3
    v_lshrrev_b32 v4, 5, v1
    v_lshl_add_u32 v252, v4, 8, v3     ; main: + h*256
    v_mov_b32 v5, 0xf0000000
    v_cmp_eq_u32 vcc, 0, v4
    v_cndmask_b32 v253, v5, v3, vcc
    ''')
    e(f'''
    s_lshr_b32 s62, s60, 3             ; c_lo
    s_add_u32 s63, s60, 2
    s_lshr_b32 s63, s63, 3             ; c_hi
    v_and_b32 v3, 15, v1
    v_lshrrev_b32 v4, 2, v3
    v_and_b32 v5, 1, v3
    v_mov_b32 v6, s62
    v_mov_b32 v7, s63
    v_cmp_eq_u32 vcc, 1, v5
    v_cndmask_b32 v6, v6, v7, vcc
    v_bfe_u32 v5, v3, 1, 1
    v_mul_u32_u24 v5, 5, v5
    v_add_u32 v5, 5, v5                ; 5 or 10
    v_cmp_eq_u32 vcc, 3, v4
    v_cndmask_b32 v5, v5, 0, vcc
    v_cndmask_b32 v4, v4, 0, vcc
    v_add_u32 v6, v6, v5               ; tile
    v_sub_u32 v7, {sI}, v4
    v_max_i32 v7, 0, v7
    v_lshl_add_u32 v7, v7, 4, v6
    v_lshlrev_b32 v8, 7, v7
    v_add_u32 v8, {FL_QKV}, v8
    s_lshl_b32 s63, {sW}, 11
    ''')


def p2_loads(e):
    for f in range(3):
        e(f'buffer_load_dwordx4 {v4(QF + 4 * f)}, v13, {srd(S_WS)}, s98 offen sc1')
        if f < 2:
            e('s_add_u32 s98, s98, 65536')
    L3, LJ = e.new_label('KV3'), e.new_label('KVJ')
    e(f'''
    s_cmp_eq_u32 {sW}, 3
    s_cbranch_scc1 {L3}
    ''')
    for sec in range(2):
        for row in range(6):
            for hf in range(2):
                lds = (KB + row * KS if sec == 0 else VB + row * VS) + hf * 1024
                src = sec * 40 * 65536 + row * 32768 + hf * 1024
                e(f'''
                s_add_u32 m0, s63, {lds}
                s_add_u32 s57, s99, {src}
                buffer_load_dwordx4 v12, {srd(S_WS)}, s57 offen sc1 lds
                ''')
    e.force_wait(vm=12)
    e(f's_branch {LJ}')
    e.label(L3)
    e(f'v_lshlrev_b32 v4, 2, v1\n v_add_u32 v4, {FL_REL}, v4\n v_add_u32 v5, 256, v4\n v_add_u32 v6, 512, v4\n v_add_u32 v7, 768, v4')
    poll_loop(e, 4, 4)
    e.label(LJ)
    e.assume_settled(12)
    e.join_vm = e.vm_n


def p2_lane_setup(e):
    e(f'''
    v_lshrrev_b32 v3, 5, v1
    v_and_b32 v4, 31, v1
    s_lshl_b32 s57, {sW}, 5
    v_mul_u32_u24 v5, {KS}, v3
    v_add_u32 v6, s57, v4
    v_lshl_add_u32 v{vK}, v6, 4, v5
    v_add_u32 v{vK}, {KB}, v{vK}
    v_lshlrev_b32 v5, 2, v3
    v_sub_u32 v{vY}, v4, v5            ; t_q - 4h
    ''')
    for r in range(16):
        c = (r & 3) + 8 * (r >> 2)
        e(f'v_cmp_le_i32 s[{64 + 2 * r}:{65 + 2 * r}], {c}, v{vY}')
    for d in range(8):
        e(f'''
        v_mov_b32 v8, 0xffff
        v_mov_b32 v9, 0xffff0000
        v_cndmask_b32 v8, 0, v8, s[{64 + 4 * d}:{65 + 4 * d}]
        v_cndmask_b32 v9, 0, v9, s[{66 + 4 * d}:{67 + 4 * d}]
        v_or_b32 v{MK + d}, v8, v9
        ''')
    e(f'''
    v_bfe_u32 v5, v1, 2, 2             ; r
    v_lshl_add_u32 v5, v3, 2, v5       ; 4h + r
    v_add_u32 v5, s57, v5              ; + 32w
    v_lshlrev_b32 v5, 4, v5            ; key*16
    v_bfe_u32 v6, v1, 4, 1
    v_and_b32 v7, 3, v1
    v_lshl_add_u32 v6, v6, 2, v7       ; pp
    ''')
    for X, reg in ((0, vVA), (1, vVB)):
        e(f'''
        v_add_u32 v7, s61, v6
        v_add_u32 v7, {5 * X}, v7       ; p
        v_lshrrev_b32 v8, 2, v7
        v_lshlrev_b32 v8, 1, v8
        v_and_b32 v9, 1, v7
        v_add_u32 v8, v8, v9            ; row
        v_mul_u32_u24 v8, {VS}, v8
        v_bfe_u32 v9, v7, 1, 1
        v_lshl_add_u32 v8, v9, 3, v8
        v_add_u32 v8, {VB}, v8
        v_bfe_u32 v9, v6, 1, 1
        v_lshlrev_b32 v9, 3, v9
        v_add_u32 v9, {OB}, v9
        v_cmp_le_u32 vcc, 5, v6
        v_cndmask_b32 v8, v8, v9, vcc
        v_add_u32 v{reg}, v8, v5
        ''')


def p2_qmask(e):
    e('v_lshrrev_b32 v3, 5, v1')
    e(f'v_subrev_u32 v5, s61, v3')
    for idx, (f, X) in enumerate(((0, 0), (1, 0), (1, 1), (2, 1))):
        for hi in range(2):
            e(f'''
            v_add_u32 v6, {(4 * f + 2 * hi - 5 * X) & 0xffffffff}, v5
            v_cmp_gt_u32 vcc, 5, v6
            v_cndmask_b32 v{QM + 4 * idx + 2 * hi}, 0, v{QF + 4 * f + 2 * hi}, vcc
            v_cndmask_b32 v{QM + 4 * idx + 2 * hi + 1}, 0, v{QF + 4 * f + 2 * hi + 1}, vcc
            ''')


def pad_for(e, text):
    n = e._need_nops(Ins(text))
    if n > 0:
        e.raw(f's_nop {n - 1}')


def head(e, X, groups, before_pv=None):
    vV = vVA if X == 0 else vVB
    Qa, Qb = QM + 8 * X, QM + 8 * X + 4

    def kreads(jb):
        b = KF + 8 * (jb & 1)
        return [f'ds_read_b128 {v4(b)}, v{vK} offset:{2 * X * KS + jb * 512}',
                f'ds_read_b128 {v4(b + 4)}, v{vK} offset:{2 * (X + 1) * KS + jb * 512}']

    def fixup(jb):
        lbl, back = e.new_label('FX'), e.new_label('FXB')
        pad_for(e, f'v_mov_b32 v{SB + 16 * jb + 15}, 0')
        e(f's_cmp_gt_i32 s58, {jb}\n s_cbranch_scc1 {lbl}')
        e.label(back)
        e.cold.append(lbl + ':')
        for r in range(16):
            e.cold.append(f'    v_mov_b32 v{SB + 16 * jb + r}, {hexf(NEG)}')
        e.cold.append(f'    s_branch {back}')

    state = {'n': 0}

    def maxops(base):
        out = []
        regs = list(range(base, base + 16))
        if state['n'] == 0:
            out.append(f'v_max3_f32 v{vM}, v{regs[0]}, v{regs[1]}, v{regs[2]}')
            out.append(f'v_max3_f32 v{vT0}, v{regs[3]}, v{regs[4]}, v{regs[5]}')
            rest = regs[6:]
        else:
            rest = regs
        for k in range(0, len(rest), 2):
            d = vM if (k // 2) % 2 == 0 else vT0
            out.append(f'v_max3_f32 v{d}, v{rest[k]}, v{rest[k + 1]}, v{d}')
        state['n'] += 1
        return out
    e(f'''
    s_lshl_b32 s57, {sI}, 2
    s_add_u32 s57, s57, {sW}           ; qb
    s_sub_i32 s58, 8, s57
    ''')
    qorder = [0, 8, 1, 2, 3, 4, 5, 6, 7]
    kb = {jb: n % 4 for n, jb in enumerate(qorder)}

    def kr(jb):
        b = KF + 8 * kb[jb]
        return [f'ds_read_b128 {v4(b)}, v{vK} offset:{2 * X * KS + jb * 512}',
                f'ds_read_b128 {v4(b + 4)}, v{vK} offset:{2 * (X + 1) * KS + jb * 512}']
    for n in range(3):
        for x in kr(qorder[n]):
            e(x)
    M = SB + 128
    for n, jb in enumerate(qorder):
        b = KF + 8 * kb[jb]
        S = vr(SB + 16 * jb, 16)
        work = []
        if n >= 2:
            p = qorder[n - 2]
            if p == 0:
                fixup(0)
            elif p == 8:
                work = [f'v_cndmask_b32 v{M + r}, v{SB + r}, v{M + r}, s[{64 + 2 * r}:{65 + 2 * r}]' for r in range(16)] + maxops(M)
            else:
                fixup(p)
                work = maxops(SB + 16 * p)
        rd = kr(qorder[n + 3]) if n + 3 < 9 else []
        h = (len(work) + 1) // 2
        e(f'v_mfma_f32_32x32x16_bf16 {S}, {v4(b)}, {v4(Qa)}, 0')
        for x in work[:h]:
            e(x)
        e(f'v_mfma_f32_32x32x16_bf16 {S}, {v4(b + 4)}, {v4(Qb)}, {S}')
        for x in rd + work[h:]:
            e(x)
    for p in qorder[-2:]:
        fixup(p)
        for x in maxops(SB + 16 * p):
            e(x)
    e(f'v_max_f32 v{vM}, v{vM}, v{vT0}')
    e(f'v_mov_b32 v{vT0}, v{vM}')
    e(f'v_permlane32_swap_b32 v{vM}, v{vT0}')
    e(f'v_max_f32 v{vM}, v{vM}, v{vT0}')
    e.ts(36 + 2 * X)
    if before_pv is not None:
        before_pv()
    e.ts(37 + 2 * X)

    def probs(base):
        sub = [f'v_pk_add_f32 {v2(base + 2 * k)}, {v2(base + 2 * k)}, {v2(vM)} op_sel_hi:[1,0] neg_lo:[0,1] neg_hi:[0,1]' for k in range(8)]
        ex = [f'v_exp_f32 v{base + k}, v{base + k}' for k in range(16)]
        cv = [f'v_cvt_pk_bf16_f32 v{base + k}, v{base + 2 * k}, v{base + 2 * k + 1}' for k in range(8)]
        out = sub + ['M0'] + ex[0:4] + ['G', cv[0]] + ex[4:6] + [cv[1], 'R'] + ex[6:8] + [cv[2], 'M1'] + ex[8:12] + \
            ['R', cv[3], 'G'] + ex[12:14] + [cv[4], 'R', 'G'] + ex[14:16] + [cv[5], 'R', 'G', cv[6], 'G', cv[7]]
        return out
    order = [1, 2, 3, 4, 5, 6, 7, 8, 0]
    bufidx = {jb: n & 1 for n, jb in enumerate(order)}
    O = vr(OA, 16)

    def vreads(jb):
        b = VF + 8 * bufidx[jb]
        return [f'ds_read_b64_tr_b16 {v2(b + 4 * sg + 2 * ee)}, v{vV} offset:{jb * 512 + sg * 256 + ee * 128}'
                for sg in range(2) for ee in range(2)]

    def pv(jb, first):
        b = VF + 8 * bufidx[jb]
        base = SB + 16 * jb
        return [f'v_mfma_f32_32x32x16_bf16 {O}, {v4(b + 4 * sg)}, {v4(base + 4 * sg)}, {"0" if (first and sg == 0) else O}' for sg in range(2)]
    for x in vreads(order[0]):
        e(x)
    prev = None
    for n, jb in enumerate(order):
        base = SB + 16 * jb
        if jb == 0:
            work = []
        else:
            work = probs(base)
            if jb == 8:
                work += [f'v_bfi_b32 v{SB + d}, v{MK + d}, 0, v{base + d}' for d in range(8)]
                work += [f'v_and_b32 v{base + d}, v{MK + d}, v{base + d}' for d in range(8)]
        ins = pv(prev, prev == order[0]) if prev is not None else []
        rd = vreads(order[n + 1]) if n + 1 < len(order) else []
        import os
        npf = int(os.environ.get('NPF', 5))
        if work:
            ng = 0
            m1_done = False
            held = []
            for x in work:
                if x == 'M0':
                    if ins:
                        e(ins[0])
                elif x == 'M1':
                    if ins:
                        e(ins[1])
                    m1_done = True
                    for y in held:
                        e(y)
                    held = []
                elif x == 'R':
                    if rd:
                        y = rd.pop(0)
                        if m1_done:
                            e(y)
                        else:
                            held.append(y)
                elif x == 'G':
                    if groups and ng < npf:
                        for y in groups.pop(0):
                            e(y)
                        ng += 1
                else:
                    e(x)
            for y in rd:
                e(y)
        else:
            for x in ins + rd:
                e(x)
        prev = jb
    for x in pv(prev, False):
        e(x)
    e(f'v_mov_b32 v{vT0}, v{OA + 8}')
    e(f'v_mov_b32 v{vT1}, v{OA + 8}')
    e(f'v_permlane32_swap_b32 v{vT0}, v{vT1}')
    e(f'v_rcp_f32 v{vT1}, v{vT1}')
    for k in range(6):
        e(f'v_pk_mul_f32 {v2(OA + 2 * k)}, {v2(OA + 2 * k)}, {v2(vT1)} op_sel_hi:[1,0]')


def p2_all(e):
    from p1 import late_store
    p2_pre(e)
    poll_flags(e, 8, 1)
    e.ts(11)
    late_store(e)
    p2_loads(e)
    p2_qmask(e)
    e.force_wait(lg=0)
    e('s_barrier')
    publish_flag(e, FL_LATE, sB, shift=2)
    e.ts(12)
    from p3 import p3_prefetch
    groups = p3_prefetch(e)

    def v_ready():
        e.force_wait(vm=min(63, e.vm_n - e.join_vm))
        e('s_barrier')

    def late_ready():
        sk = e.new_label('LP')
        e(f'''s_cmp_lg_u32 {sW}, 3
        s_cbranch_scc1 {sk}
        v_lshlrev_b32 v8, 2, v1
        v_add_u32 v8, {FL_LATE}, v8
        v_add_u32 v9, 256, v8
        v_add_u32 v10, 128, v1
        v_min_u32 v10, 159, v10
        v_lshlrev_b32 v10, 2, v10
        v_add_u32 v10, {FL_LATE}, v10''')
        poll_loop(e, 8, 3, scratch=249)
        e.label(sk)
        e('s_barrier')
    for X in range(2):
        head(e, X, groups, v_ready if X == 0 else late_ready)
        e.ts(40 + X)
        for k in range(4):
            e(f'v_cvt_pk_bf16_f32 v{8 + k}, v{OA + 2 * k}, v{OA + 2 * k + 1}')
        e(f'v_cvt_pk_bf16_f32 v{12 + 2 * X}, v{OA + 8}, v{OA + 9}')
        e(f'v_cvt_pk_bf16_f32 v{13 + 2 * X}, v{OA + 10}, v{OA + 11}')
        e(f'buffer_store_dwordx4 v[8:11], v252, {srd(S_WS)}, s96 offen offset:{512 * X} sc1')
    e(f'buffer_store_dwordx4 v[12:15], v253, {srd(S_WS)}, s97 offen sc1')
    e.ts(13)
    e.force_wait(vm=0)
    e('s_barrier')
    e(f's_lshl_b32 s58, {sI}, 4\n s_add_u32 s58, s58, {sJ}')
    publish_flag(e, FL_O, 's58')
    for g in groups:
        for x in g:
            e(x)
```

```python
from common import *
from p0 import *
from p1 import sum4, bf16_round4

M2 = LDS_MISC
M2_SB, M2_G2, M2_GA, M2_GB = M2, M2 + 2560, M2 + 5120, M2 + 5440
VEC = M2 + 5760
UVT = VEC + 3840
RSB = UVT + 1536
assert RSB + 2048 <= LDS_SIZE
RED3 = 122880
RED5 = 0
X1P = 230
A_X, A_M2 = 200, 210


def ksplit_setup(e):
    e(f'''
    s_and_b32 s60, {sJ}, 1
    s_lshr_b32 s61, {sJ}, 1
    s_lshl_b32 s62, {sI}, 3
    s_lshl_b32 s63, s60, 2
    s_add_u32 s62, s62, s63
    ''')


def touch_list(ws_base, total_lines, vaddr, sreg, areg):
    per_wave = total_lines // 128
    out = []
    for k in range((per_wave + 63) // 64):
        n = min(64, per_wave - 64 * k)
        g = [f's_lshr_b32 {sreg}, {sB}, 3', f's_lshl_b32 {sreg}, {sreg}, 2', f's_add_u32 {sreg}, {sreg}, {sW}',
             f's_mul_i32 {sreg}, {sreg}, {per_wave * 128}', f's_add_u32 {sreg}, {sreg}, {ws_base + 64 * k * 128}']
        if n < 64:
            assert n > 32
            g += [f's_mov_b32 exec_hi, {hex((1 << (n - 32)) - 1)}', f'buffer_load_dword {areg}, {vaddr}, {srd(S_WS)}, {sreg} offen sc1', 's_mov_b32 exec_hi, -1']
        else:
            g += [f'buffer_load_dword {areg}, {vaddr}, {srd(S_WS)}, {sreg} offen sc1']
        out.append(g)
    return out


def p3_prefetch(e):
    ksplit_setup(e)
    e(f'''
    s_mul_i32 s98, s61, 20
    s_and_b32 s58, {sW}, 1
    s_mul_i32 s58, s58, 10
    s_add_u32 s98, s98, s58
    s_mul_i32 s98, s98, 5120
    s_add_u32 s98, s98, {WS_WOF}
    s_add_u32 s57, s62, {sW}
    s_lshl_b32 s57, s57, 4
    s_mul_i32 s63, s57, 1280
    s_mul_i32 s58, s61, 160
    s_add_u32 s63, s63, s58
    v_and_b32 v4, 15, v1
    v_lshrrev_b32 v5, 4, v1
    v_mul_u32_u24 v7, 1280, v4
    v_lshl_add_u32 v7, v5, 3, v7
    v_lshlrev_b32 v4, 4, v0
    v_add_u32 v5, {(1920 + 1024) * 4}, v4          ; tid < 64
    s_mul_i32 s58, s61, 320
    s_add_u32 s59, s58, {1280 * 4 - 64 * 16}
    v_add_u32 v6, s59, v4
    s_add_u32 s59, s58, {3200 * 4 - 84 * 16}
    v_add_u32 v8, s59, v4
    v_cmp_gt_u32 vcc, 84, v0
    v_cndmask_b32 v6, v8, v6, vcc
    v_cmp_gt_u32 vcc, 64, v0
    v_cndmask_b32 v5, v6, v5, vcc
    v_add_u32 v4, {1920 * 4}, v4
    s_mul_i32 s99, {sJ}, 122880
    s_mul_i32 s60, {sW}, 10240
    s_add_u32 s60, s60, 81920
    s_add_u32 s99, s99, s60
    s_add_u32 s99, s99, {WS_W1F}
    ''')
    e(f'''
    v_min_u32 v8, 95, v0
    v_lshlrev_b32 v6, 1, v8
    ''')
    out = [f's_mul_i32 s57, {sJ}, 192', f'buffer_load_ushort a242, v6, {srd(S_B1)}, s57 offen']
    for k in range(50):
        if k and k % 4 == 0:
            out.append('s_add_u32 s98, s98, 4096')
        out.append(f'buffer_load_dwordx4 {a4(4 * k)}, v2, {srd(S_WS)}, s98 offen offset:{(k % 4) * 1024} sc1')
    for a in range(5):
        out.append(f'buffer_load_dwordx2 {ar(A_X + 2 * a, 2)}, v7, {srd(S_X)}, s63 offen offset:{32 * a}')
    for k in range(10):
        out.append(f's_add_u32 m0, s60, {k * 1024}')
        out.append(f's_add_u32 s59, s99, {k * 1024}')
        out.append(f'buffer_load_dwordx4 v2, {srd(S_WS)}, s59 offen sc1 lds')
    for p in range(4):
        out.append(f's_mov_b32 s57, {WS_MODP + p * 15360}')
        out.append(f'buffer_load_dwordx4 {a4(A_M2 + 4 * p)}, v4, {srd(S_WS)}, s57 offen sc1')
        out.append(f's_mov_b32 s57, {WS_MODP + p * 15360}')
        out.append(f'buffer_load_dwordx4 {a4(A_M2 + 16 + 4 * p)}, v5, {srd(S_WS)}, s57 offen sc1')
    return groups_of(out)


def slot_pos(e, m, out, t):
    e(f'''
    v_mul_u32_u24 v{t}, 3277, v{m}
    v_lshrrev_b32 v{t}, 16, v{t}             ; cs = m/20
    v_mul_u32_u24 v{t + 1}, 20, v{t}
    v_sub_u32 v{t + 1}, v{m}, v{t + 1}       ; mm
    v_mul_u32_u24 v{t}, 80, v{t}             ; 16*5*cs
    v_lshrrev_b32 v{t + 2}, 3, v{t + 1}      ; grp
    v_lshlrev_b32 v{t + 2}, 5, v{t + 2}      ; 16*2*grp
    v_bfe_u32 v{t + 3}, v{t + 1}, 1, 1       ; gidx>>1
    v_lshl_add_u32 v{t + 2}, v{t + 3}, 4, v{t + 2}
    v_and_b32 v{t + 3}, 1, v{t + 1}          ; h
    v_lshl_add_u32 v{t + 2}, v{t + 3}, 3, v{t + 2}
    v_bfe_u32 v{t + 3}, v{t + 1}, 2, 1       ; jjhi
    v_lshl_add_u32 v{t + 2}, v{t + 3}, 2, v{t + 2}
    v_bfe_u32 v{t + 3}, v{t + 1}, 1, 1       ; (mm-16)>>1
    v_lshlrev_b32 v{out}, 3, v{t + 3}
    v_and_b32 v{t + 3}, 1, v{t + 1}
    v_lshl_add_u32 v{out}, v{t + 3}, 2, v{out}
    v_add_u32 v{out}, 64, v{out}
    v_cmp_gt_u32 vcc, 16, v{t + 1}
    v_cndmask_b32 v{out}, v{out}, v{t + 2}, vcc
    v_add_u32 v{out}, v{out}, v{t}
    v_lshlrev_b32 v{out}, 1, v{out}
    ''')
    for m_ in range(160):
        assert (m_ * 3277) >> 16 == m_ // 20


def window_c_pre(e):
    e(f'''
    v_subrev_u32 v3, 160, v0
    v_cmp_gt_u32 vcc, 160, v0
    v_cndmask_b32 v3, v3, v0, vcc
    v_mov_b32 v4, {VEC}
    v_mov_b32 v5, {VEC + 1280}
    v_cndmask_b32 v74, v4, v5, vcc
    ''')
    slot_pos(e, 3, 72, 6)
    e('v_add_u32 v72, v72, v74')
    e('v_add_u32 v3, 96, v0\n v_min_u32 v3, 159, v3')
    slot_pos(e, 3, 73, 6)
    e(f'v_add_u32 v73, {VEC}, v73')


def window_c(e):
    window_c_pre(e)
    R0, R1 = 16, 32
    for k in range(16):
        e(f'v_accvgpr_read_b32 v{R0 + k}, a{A_M2 + k}')
    for k in range(16):
        e(f'v_accvgpr_read_b32 v{R1 + k}, a{A_M2 + 16 + k}')
    e(f'''
    v_accvgpr_read_b32 v70, a242
    v_cmp_le_u32 vcc, 160, v0
    v_cndmask_b32 v5, 0, 1.0, vcc
    v_cmp_gt_u32 vcc, 64, v0
    v_cndmask_b32 v6, 0, 1.0, vcc
    ''')
    for R, one in ((R0, 'v5'), (R1, 'v6')):
        sum4(e, R)
        bf16_round4(e, R)
        for k in range(4):
            e(f'v_add_f32 v{R + k}, {one}, v{R + k}')
        bf16_round4(e, R)
    e(f'''
    v_lshlrev_b32 v3, 4, v0
    v_add_u32 v3, {M2}, v3
    v_add_u32 v4, 4096, v3
    ds_write_b128 v3, {v4(R0)}
    ds_write_b64 v72, {v2(R0 + 4)}
    v_mov_b32 v8, 0x3f803f80
    v_mov_b32 v9, 0x3f803f80
    v_min_u32 v10, 159, v0
    v_lshlrev_b32 v10, 3, v10
    v_add_u32 v10, {VEC + 2560}, v10
    ds_write_b64 v10, v[8:9]
    v_lshlrev_b32 v70, 16, v70
    v_min_u32 v10, 95, v0
    v_lshlrev_b32 v10, 2, v10
    v_add_u32 v10, {UVT + 3 * 384}, v10
    ds_write_b32 v10, v70
    v_cmp_gt_u32 vcc, 104, v0
    s_and_saveexec_b64 s[58:59], vcc
    ''')
    lbl, l2 = e.new_label('M2S'), e.new_label('M2T')
    e(f's_cbranch_execz {lbl}')
    e.raw(f'ds_write_b128 v4, {v4(R1)}')
    e.raw('v_cmp_gt_u32 vcc, 64, v0')
    e.raw('s_nop 1')
    e.raw('s_and_b64 exec, exec, vcc')
    e.raw(f's_cbranch_execz {lbl}')
    e.raw(f'ds_write_b64 v73, {v2(R1 + 4)}')
    e.label(lbl)
    e('s_mov_b64 exec, s[58:59]')
    e.force_wait(lg=0)
    e('s_barrier')


def lane_vec_reads(e, dst, vaddr, off):
    for a in range(5):
        e(f'ds_read_b128 {v4(dst + 4 * a)}, {vaddr} offset:{off + 64 * a}')


def poll_group(e, base):
    e(f'''
    v_and_b32 v8, 15, v1
    s_lshl_b32 s57, {sI}, 4
    v_add_u32 v8, s57, v8
    v_lshlrev_b32 v8, 7, v8
    v_add_u32 v8, {base}, v8
    ''')
    poll_flags(e, 8, 1)


def p3(e):
    window_c(e)
    ksplit_setup(e)
    BF, ACC = 80, 160
    e(f'''
    s_and_b32 s57, {sW}, 1
    s_mul_i32 s58, s57, 10
    s_add_u32 s59, s62, {sW}
    s_xor_b32 s63, {sW}, 1
    s_add_u32 s63, s63, s62
    s_mul_i32 s59, s59, 20
    s_add_u32 s59, s59, s58
    s_lshl_b32 s59, s59, 10
    s_add_u32 s96, s59, {WS_OF}
    s_mul_i32 s63, s63, 20
    s_add_u32 s63, s63, s58
    s_lshl_b32 s63, s63, 10
    s_add_u32 s97, s63, {WS_OF}
    ''')
    e(f'''
    v_lshrrev_b32 v4, 4, v1            ; g
    v_lshlrev_b32 v6, 4, v4
    v_add_u32 v7, {M2}, v6             ; slices: 4g*4
    s_mul_i32 s57, s61, 320
    v_add_u32 v6, s57, v7
    s_xor_b32 s57, {sW}, 1
    s_mul_i32 s57, s57, 5120
    s_add_u32 s57, s57, {RED3}
    v_add_u32 v12, s57, v2             ; reduction write address
    s_mul_i32 s57, {sW}, 5120
    s_add_u32 s57, s57, {RED3}
    v_add_u32 v13, s57, v2             ; reduction read address
    ''')
    GA, G2, SBv = 16, 36, 56
    lane_vec_reads(e, GA, 'v7', M2_GA - M2)
    lane_vec_reads(e, G2, 'v6', M2_G2 - M2)
    lane_vec_reads(e, SBv, 'v6', M2_SB - M2)
    X = 204
    for k in range(10):
        e(f'v_accvgpr_read_b32 v{224 + (k & 1)}, a{A_X + k}')
        e(f'v_lshlrev_b32 v{X + 2 * k}, 16, v{224 + (k & 1)}')
        e(f'v_and_b32 v{X + 2 * k + 1}, 0xffff0000, v{224 + (k & 1)}')
    e.ts(14)
    poll_group(e, FL_O)
    e.ts(15)

    def oload(tau, s):
        sr = 's97' if tau == 1 else 's96'
        out = []
        if s and s % 4 == 0:
            out.append(f's_add_u32 {sr}, {sr}, 4096')
        out.append(f'buffer_load_dwordx4 {v4(BF + (10 * tau + s) * 4)}, v2, {srd(S_WS)}, {sr} offen offset:{(s % 4) * 1024} sc1')
        return out
    for s in range(10):
        for x in oload(1, s):
            e(x)
    e(f'''
    s_mul_i32 s98, {sJ}, 122880
    s_mul_i32 s99, {sW}, 20480
    s_add_u32 s98, s98, s99
    s_add_u32 s98, s98, {WS_W1F}
    v_lshlrev_b32 v14, 7, v1
    ''')
    w1 = [[f's_add_u32 m0, s99, {k * 1024}', f's_add_u32 s59, s98, {k * 1024}',
           f'buffer_load_dwordx4 v2, {srd(S_WS)}, s59 offen sc1 lds'] for k in range(20)]
    t2 = touch_list(WS_W2F, 15360, 'v14', 's57', 'a246')
    for tau in (1, 0):
        for s in range(10):
            for a in range(5):
                r = v4(ACC + (5 * tau + a) * 4)
                c = '0' if s == 0 else r
                e(f'v_mfma_f32_16x16x32_bf16 {r}, {a4((5 * s + a) * 4)}, {v4(BF + (10 * tau + s) * 4)}, {c}')
            if tau == 1:
                for x in oload(0, s):
                    e(x)
                for x in w1.pop(0):
                    e(x)
            else:
                for x in w1.pop(0):
                    e(x)
            if s == 0 or s == 9:
                e.ts(48 + 2 * (1 - tau) + (1 if s == 9 else 0))
            if tau == 0 and s == 1:
                for a in range(5):
                    e(f'ds_write_b128 v12, {v4(ACC + (5 + a) * 4)} offset:{a * 1024}')
    e.ts(16)
    e.wait(lg=0)
    e('s_barrier')
    T = ACC + 20
    for a in range(5):
        e(f'ds_read_b128 {v4(T + 4 * a)}, v13 offset:{a * 1024}')
    for k in range(10):
        e(f'v_pk_add_f32 {v2(ACC + 2 * k)}, {v2(ACC + 2 * k)}, {v2(T + 2 * k)}')
    e.ts(17)
    Y, YP = 80, 100
    for k in range(10):
        e(f'v_pk_fma_f32 {v2(X + 2 * k)}, {v2(GA + 2 * k)}, {v2(ACC + 2 * k)}, {v2(X + 2 * k)}')
    for k in range(10):
        e(f'v_pk_mul_f32 {v2(Y + 2 * k)}, {v2(X + 2 * k)}, {v2(G2 + 2 * k)}')
    for k in range(10):
        e(f'v_cvt_pk_bf16_f32 v{YP + k}, v{Y + 2 * k}, v{Y + 2 * k + 1}')
    e(f'''
    s_lshr_b32 s57, s62, 1
    s_lshr_b32 s58, {sW}, 1
    s_add_u32 s57, s57, s58            ; tb32
    s_mul_i32 s96, s57, 40
    s_mul_i32 s58, s61, 5
    s_add_u32 s96, s96, s58
    s_lshl_b32 s96, s96, 10
    s_and_b32 s58, {sW}, 1
    s_lshl_b32 s58, s58, 8
    s_add_u32 s96, s96, s58
    s_add_u32 s96, s96, {WS_X1G}
    s_lshl_b32 s97, s57, 3
    s_add_u32 s97, s97, s61
    s_lshl_b32 s97, s97, 10
    s_lshl_b32 s58, s58, 1
    s_add_u32 s97, s97, s58
    s_add_u32 s97, s97, {WS_STATS}
    v_and_b32 v3, 15, v1               ; t16
    v_lshrrev_b32 v5, 1, v4            ; g>>1
    v_and_b32 v7, 1, v4                ; g&1
    v_lshlrev_b32 v8, 10, v5
    v_lshl_add_u32 v8, v7, 9, v8
    v_lshl_add_u32 v8, v3, 4, v8
    v_lshlrev_b32 v9, 9, v5
    v_lshl_add_u32 v9, v3, 4, v9
    v_lshl_add_u32 v9, v7, 3, v9
    buffer_store_dwordx4 {v4(YP)}, v8, {srd(S_WS)}, s96 offen sc1
    buffer_store_dwordx4 {v4(YP + 4)}, v8, {srd(S_WS)}, s96 offen offset:2048 sc1
    s_add_u32 s96, s96, 4096
    buffer_store_dwordx2 {v2(YP + 8)}, v9, {srd(S_WS)}, s96 offen sc1
    ''')
    ST = 112
    defs = [('add', X, None), ('fma', X, X), ('add', Y, None), ('fma', Y, Y), ('fma', Y, G2), ('fma', Y, SBv)]
    for k in range(10):
        for n, (op, A, B) in enumerate(defs):
            r = ST + 2 * n
            if op == 'add':
                if k == 0:
                    e(f'v_pk_add_f32 {v2(r)}, {v2(A)}, {v2(A + 2)}')
                elif k >= 2:
                    e(f'v_pk_add_f32 {v2(r)}, {v2(r)}, {v2(A + 2 * k)}')
            else:
                if k == 0:
                    e(f'v_pk_mul_f32 {v2(r)}, {v2(A)}, {v2(B)}')
                else:
                    e(f'v_pk_fma_f32 {v2(r)}, {v2(A + 2 * k)}, {v2(B + 2 * k)}, {v2(r)}')
    for n in range(6):
        e(f'v_add_f32 v{ST + 2 * n}, v{ST + 2 * n}, v{ST + 2 * n + 1}')
    for swp in ('v_permlane16_swap_b32', 'v_permlane32_swap_b32'):
        for n in range(6):
            e(f'v_mov_b32 v{ST + 2 * n + 1}, v{ST + 2 * n}')
        for n in range(6):
            e(f'{swp} v{ST + 2 * n}, v{ST + 2 * n + 1}')
        for n in range(6):
            e(f'v_add_f32 v{ST + 2 * n}, v{ST + 2 * n}, v{ST + 2 * n + 1}')
    e(f'''
    v_cmp_eq_u32 vcc, 0, v4
    v_lshlrev_b32 v10, 5, v3
    v_lshl_add_u32 v10, v4, 4, v10
    v_cndmask_b32 v12, v{ST + 8}, v{ST}, vcc
    v_cndmask_b32 v13, v{ST + 10}, v{ST + 2}, vcc
    v_cndmask_b32 v14, 0, v{ST + 4}, vcc
    v_cndmask_b32 v15, 0, v{ST + 6}, vcc
    v_mov_b32 v11, 0xf0000000
    v_cmp_gt_u32 vcc, 2, v4
    v_cndmask_b32 v10, v11, v10, vcc
    buffer_store_dwordx4 v[12:15], v10, {srd(S_WS)}, s97 offen sc1
    ''')
    for k in range(10):
        e(f'v_cvt_pk_bf16_f32 v{X1P + k}, v{X + 2 * k}, v{X + 2 * k + 1}')
    e.settle()
    e('s_barrier')
    e(f's_lshl_b32 s62, {sI}, 4\n s_add_u32 s62, s62, {sJ}')
    publish_flag(e, FL_X1, 's62')


def wave_allsum(e, r, t):
    dpp_rowsum(e, r)
    for swp in ('v_permlane16_swap_b32', 'v_permlane32_swap_b32'):
        e(f'v_mov_b32 v{t}, v{r}')
        e(f'{swp} v{r}, v{t}')
        e(f'v_add_f32 v{r}, v{r}, v{t}')


def window_d(e, C, groups):
    e(f'''
    s_min_u32 s57, {sW}, 2
    s_mul_i32 s58, s57, 40960
    v_add_u32 v3, s58, v2              ; W1 fragment address
    v_and_b32 v4, 31, v1
    v_min_u32 v4, 2, v4
    v_mul_u32_u24 v4, 1280, v4
    v_lshrrev_b32 v5, 5, v1
    v_lshl_add_u32 v4, v5, 4, v4
    v_add_u32 v4, {VEC}, v4
    v_mul_u32_u24 v6, 40, v1
    v_add_u32 v6, {M2}, v6
    ''')

    def rd(s):
        b = 16 + 8 * (s & 3)
        return [f'ds_read_b128 {v4(b)}, v3 offset:{s * 1024}', f'ds_read_b128 {v4(b + 4)}, v4 offset:{s * 32}']
    G, S_, r0 = 84, 94, 104
    work = []
    for k in range(5):
        work.append(f'ds_read_b64 {v2(G + 2 * k)}, v6 offset:{M2_G2 - M2 + 8 * k}')
        work.append(f'ds_read_b64 {v2(S_ + 2 * k)}, v6 offset:{M2_SB - M2 + 8 * k}')
    defs = [('add', G, None), ('add', S_, None), ('mul', G, G), ('mul', G, S_), ('mul', S_, S_)]
    for n, (op, A, B) in enumerate(defs):
        r = r0 + 2 * n
        for k in range(5):
            if op == 'add':
                if k == 0:
                    work.append(f'v_pk_add_f32 {v2(r)}, {v2(A)}, {v2(A + 2)}')
                elif k >= 2:
                    work.append(f'v_pk_add_f32 {v2(r)}, {v2(r)}, {v2(A + 2 * k)}')
            else:
                if k == 0:
                    work.append(f'v_pk_mul_f32 {v2(r)}, {v2(A)}, {v2(B)}')
                else:
                    work.append(f'v_pk_fma_f32 {v2(r)}, {v2(A + 2 * k)}, {v2(B + 2 * k)}, {v2(r)}')
        work.append(f'v_add_f32 v{C + n}, v{r}, v{r + 1}')
    for nn in (8, 4, 2, 1):
        for n in range(5):
            work.append(f'v_add_f32_dpp v{C + n}, v{C + n}, v{C + n} row_ror:{nn} row_mask:0xf bank_mask:0xf')
    for swp in ('v_permlane16_swap_b32', 'v_permlane32_swap_b32'):
        for n in range(5):
            work.append(f'v_mov_b32 v{r0 + n}, v{C + n}')
        for n in range(5):
            work.append(f'{swp} v{C + n}, v{r0 + n}')
        for n in range(5):
            work.append(f'v_add_f32 v{C + n}, v{C + n}, v{r0 + n}')
    for n in range(5):
        work.append(f'v_mul_f32 v{C + n}, {hexf(1.0 / 640)}, v{C + n}')
    for s in range(3):
        for x in rd(s):
            e(x)
    wi = 0
    for s in range(40):
        if s + 3 < 40:
            for x in rd(s + 3):
                e(x)
        b = 16 + 8 * (s & 3)
        c = '0' if s == 0 else vr(64, 16)
        e(f'v_mfma_f32_32x32x16_bf16 {vr(64, 16)}, {v4(b)}, {v4(b + 4)}, {c}')
        for x in work[wi:wi + 3]:
            e(x)
        wi += 3
        if s % 2 == 1 and groups:
            for x in groups.pop(0):
                e(x)
    for x in work[wi:]:
        e(x)
    assert not groups
    e(f'''
    v_and_b32 v4, 31, v1
    v_mul_u32_u24 v4, 384, v4
    v_lshl_add_u32 v4, v5, 4, v4
    s_lshl_b32 s57, s57, 7
    s_add_u32 s57, s57, {UVT}
    v_add_u32 v4, s57, v4
    s_mov_b32 exec_lo, 7
    s_mov_b32 exec_hi, 7
    ''')
    for q in range(4):
        e(f'ds_write_b128 v4, {v4(64 + 4 * q)} offset:{32 * q}')
    e('s_mov_b64 exec, -1')
    e.wait(lg=0)


def w2_setup(e):
    e(f'''
    s_lshr_b32 s61, {sJ}, 1
    s_mul_i32 s57, s61, 48
    s_mul_i32 s58, {sW}, 12
    s_add_u32 s57, s57, s58
    s_mul_i32 s57, s57, 5120
    s_add_u32 s95, s57, {WS_W2F}
    ''')


def w2loads(k0, k1):
    out = []
    for k in range(k0, k1):
        if k and k % 4 == 0:
            out.append('s_add_u32 s95, s95, 4096')
        out.append(f'buffer_load_dwordx4 {a4(4 * k)}, v2, {srd(S_WS)}, s95 offen offset:{(k % 4) * 1024} sc1')
    return out


def groups_of(lst):
    groups, cur = [], []
    for x in lst:
        cur.append(x)
        if x.startswith('buffer'):
            groups.append(cur)
            cur = []
    if cur:
        groups.append(cur)
    return groups


def p4(e):
    C = 156
    w2_setup(e)
    window_d(e, C, groups_of(w2loads(0, 20)))
    e.ts(19)
    SR = 96

    def xreg(s):
        return v4(16 + 4 * s) if s < 16 else a4(160 + 4 * (s - 16))
    e(f'''
    s_lshl_b32 s57, {sI}, 2
    s_add_u32 s57, s57, {sW}           ; tb32
    s_mul_i32 s98, s57, 40960
    s_add_u32 s98, s98, {WS_X1G}
    s_lshl_b32 s99, s57, 13
    s_add_u32 s99, s99, {WS_STATS}
    ''')

    def xload(s):
        out = []
        if s and s % 4 == 0:
            out.append('s_add_u32 s98, s98, 4096')
        out.append(f'buffer_load_dwordx4 {xreg(s)}, v2, {srd(S_WS)}, s98 offen offset:{(s % 4) * 1024} sc1')
        return out

    def sload(cs):
        out = []
        if cs == 4:
            out.append('s_add_u32 s99, s99, 4096')
        out.append(f'buffer_load_dwordx4 {v4(SR + 4 * cs)}, v2, {srd(S_WS)}, s99 offen offset:{(cs % 4) * 1024} sc1')
        return out
    NUP = 12
    RSC = 152
    rs = []
    for cs in range(1, 8):
        for h in range(2):
            rs.append(f'v_pk_add_f32 {v2(SR + 2 * h)}, {v2(SR + 2 * h)}, {v2(SR + 4 * cs + 2 * h)}')
    T = SR + 8
    for k in range(4):
        rs.append(f'v_mov_b32_dpp v{T + k}, v{SR + k} quad_perm:[1,0,3,2] row_mask:0xf bank_mask:0xf')
    rs.append('v_and_b32 v3, 1, v1')
    rs.append('v_cmp_eq_u32 vcc, 0, v3')
    for k in range(4):
        rs.append(f'v_cndmask_b32 v{SR + 16 + k}, v{T + k}, v{SR + k}, vcc')
    for k in range(2):
        rs.append(f'v_cndmask_b32 v{SR + 20 + k}, v{SR + k}, v{T + k}, vcc')
    Sx, Sxx, Sy, Syy, Syg, Sys = (SR + 16 + k for k in range(6))
    r0 = SR
    inv = hexf(1.0 / 640)
    rs += f'''v_mul_f32 v{Sx}, {inv}, v{Sx}
    v_mul_f32 v{Sxx}, {inv}, v{Sxx}
    v_mul_f32 v{Sy}, {inv}, v{Sy}
    v_mul_f32 v{Syy}, {inv}, v{Syy}
    v_mul_f32 v{Syg}, {inv}, v{Syg}
    v_mul_f32 v{Sys}, {inv}, v{Sys}
    v_fma_f32 v{r0}, -v{Sx}, v{Sx}, v{Sxx}
    v_add_f32 v{r0}, {hexf(1e-5)}, v{r0}
    v_rsq_f32 v{r0}, v{r0}
    v_fma_f32 v{r0 + 1}, -v{Sx}, v{C}, v{Sy}
    v_mul_f32 v{r0 + 3}, v{Sx}, v{C + 2}
    v_fma_f32 v{r0 + 2}, v{r0}, v{r0 + 1}, v{C + 1}
    v_fma_f32 v{r0 + 3}, -2.0, v{Syg}, v{r0 + 3}
    v_fma_f32 v{r0 + 3}, v{Sx}, v{r0 + 3}, v{Syy}
    v_fma_f32 v{r0 + 4}, -v{Sx}, v{C + 3}, v{Sys}
    v_mul_f32 v{r0 + 5}, v{r0}, v{r0 + 3}
    v_fma_f32 v{r0 + 5}, 2.0, v{r0 + 4}, v{r0 + 5}
    v_fma_f32 v{r0 + 5}, v{r0}, v{r0 + 5}, v{C + 4}
    v_fma_f32 v{r0 + 5}, -v{r0 + 2}, v{r0 + 2}, v{r0 + 5}
    v_add_f32 v{r0 + 5}, {hexf(1e-5)}, v{r0 + 5}
    v_rsq_f32 v{r0 + 5}, v{r0 + 5}
    s_lshl_b32 s57, {sW}, 9
    s_add_u32 s57, s57, {RSB}
    v_mul_f32 v{r0 + 8}, v{r0 + 5}, v{r0}
    v_mul_f32 v{r0 + 9}, -v{r0 + 8}, v{Sx}
    v_mov_b32 v{r0 + 10}, v{r0 + 5}
    v_mul_f32 v{r0 + 11}, -v{r0 + 5}, v{r0 + 2}
    v_lshrrev_b32 v3, 1, v1
    v_lshlrev_b32 v3, 4, v3
    v_add_u32 v3, s57, v3
    ds_write_b128 v3, {v4(r0 + 8)}
    v_and_b32 v3, 31, v1
    v_lshlrev_b32 v3, 4, v3
    v_add_u32 v3, s57, v3
    ds_read_b128 {v4(RSC)}, v3'''.split('\n')
    rs = [x.strip() for x in rs]
    c0 = -2.0 * LOG2E * (2.0 / 3.141592653589793) ** 0.5
    c1 = c0 * 0.044715
    vW, vK, vO = [240, 241, 242], 243, 244
    e(f'''
    s_lshl_b32 s57, {sI}, 3
    s_lshl_b32 s58, {sW}, 1
    s_add_u32 s57, s57, s58
    s_mul_i32 s57, s57, 48
    s_mul_i32 s58, {sJ}, 3
    s_add_u32 s57, s57, s58
    s_lshl_b32 s57, s57, 10
    s_add_u32 s96, s57, {WS_HH}
    v_bfe_u32 v3, v1, 4, 1
    v_mul_u32_u24 v3, 49152, v3
    v_and_b32 v4, 15, v1
    v_lshl_add_u32 v3, v4, 4, v3
    v_lshrrev_b32 v4, 5, v1
    v_lshl_add_u32 v{vO}, v4, 8, v3
    v_lshlrev_b32 v4, 4, v4
    v_add_u32 v{vK}, {UVT}, v4
    s_mov_b32 s60, {hexf(c0)}
    s_mov_b32 s61, {hexf(c0)}
    s_mov_b32 s62, {hexf(c1)}
    s_mov_b32 s63, {hexf(c1)}
    v_mov_b32 v{vW[0]}, v2
    v_add_u32 v{vW[1]}, 40960, v2
    v_add_u32 v{vW[2]}, 81920, v2
    ''')
    ACC = [176, 192, 208]
    KB_ = 128
    tt = [144, 146, 148, 150]
    WF = [[80, 84], [88, 92]]

    def epi(tau):
        Z = ACC[tau]
        out = []

        def consts(q):
            return [f'ds_read_b128 {v4(KB_ + 4 * n)}, v{vK} offset:{n * 384 + (32 * tau + 8 * q) * 4}' for n in range(4)]
        out += consts(0)
        for q in range(4):
            aff = []
            for r in range(4):
                aff.append(f'v_fma_f32 v{Z + 4 * q + r}, v{Z + 4 * q + r}, v{RSC}, v{KB_ + 12 + r}')
            for n, sc in ((0, RSC + 1), (1, RSC + 2), (2, RSC + 3)):
                for r in range(4):
                    aff.append(f'v_fmac_f32 v{Z + 4 * q + r}, v{KB_ + 4 * n + r}, v{sc}')
            out += ['M'] + aff[:8] + ['M'] + aff[8:]
            if q < 3:
                nxt = consts(q + 1)
            else:
                nxt = []
            a_, b_ = tt[(2 * q) & 3], tt[(2 * q + 1) & 3]
            za, zb = Z + 4 * q, Z + 4 * q + 2
            out += nxt
            out += [f'v_pk_mul_f32 {v2(a_)}, {v2(za)}, {v2(za)}', f'v_pk_mul_f32 {v2(b_)}, {v2(zb)}, {v2(zb)}',
                    f'v_pk_mul_f32 {v2(a_)}, {v2(a_)}, s[62:63]', f'v_pk_mul_f32 {v2(b_)}, {v2(b_)}, s[62:63]',
                    f'v_pk_add_f32 {v2(a_)}, {v2(a_)}, s[60:61]', f'v_pk_add_f32 {v2(b_)}, {v2(b_)}, s[60:61]',
                    f'v_pk_mul_f32 {v2(a_)}, {v2(a_)}, {v2(za)}', f'v_pk_mul_f32 {v2(b_)}, {v2(b_)}, {v2(zb)}',
                    'M', f'v_exp_f32 v{a_}, v{a_}', f'v_exp_f32 v{a_ + 1}, v{a_ + 1}', f'v_exp_f32 v{b_}, v{b_}', f'v_exp_f32 v{b_ + 1}, v{b_ + 1}',
                    f'v_pk_add_f32 {v2(a_)}, {v2(a_)}, 1.0 op_sel_hi:[1,0]', f'v_pk_add_f32 {v2(b_)}, {v2(b_)}, 1.0 op_sel_hi:[1,0]',
                    'M', f'v_rcp_f32 v{a_}, v{a_}', f'v_rcp_f32 v{a_ + 1}, v{a_ + 1}', f'v_rcp_f32 v{b_}, v{b_}', f'v_rcp_f32 v{b_ + 1}, v{b_ + 1}',
                    'M', f'v_mul_f32 v{za}, v{za}, v{a_}', f'v_mul_f32 v{za + 1}, v{za + 1}, v{a_ + 1}',
                    f'v_mul_f32 v{zb}, v{zb}, v{b_}', f'v_mul_f32 v{zb + 1}, v{zb + 1}, v{b_ + 1}',
                    f'v_cvt_pk_bf16_f32 v{Z + 2 * q}, v{za}, v{za + 1}', f'v_cvt_pk_bf16_f32 v{Z + 2 * q + 1}, v{zb}, v{zb + 1}', 'G']
            if q == 1:
                out.append(f's_add_u32 s57, s96, {1024 * tau}')
                out.append(f'buffer_store_dwordx4 {v4(Z)}, v{vO}, {srd(S_WS)}, s57 offen sc1')
            if q == 3:
                out.append(f's_add_u32 s57, s96, {1024 * tau}')
                out.append(f'buffer_store_dwordx4 {v4(Z + 4)}, v{vO}, {srd(S_WS)}, s57 offen offset:512 sc1')
        return out
    poll_group(e, FL_X1)
    e.ts(20)
    for s in range(NUP):
        for x in xload(s):
            e(x)
    e.ts(21)

    NB1 = 3
    WF1 = [[80, 84], [88, 92], [246, 250]]

    def wr1(s):
        return [f'ds_read_b128 {v4(WF1[s % NB1][t])}, v{vW[t]} offset:{s * 1024}' for t in range(2)]
    for x in wr1(0) + wr1(1):
        e(x)
    later = [xload(s) for s in range(NUP, 40)]
    for k, cs in enumerate(range(8)):
        later.insert(8 + 2 * k, sload(cs))
    fi = 0
    for s in range(40):
        for t in range(2):
            Z = vr(ACC[t], 16)
            e(f'v_mfma_f32_32x32x16_bf16 {Z}, {v4(WF1[s % NB1][t])}, {xreg(s)}, {"0" if s == 0 else Z}')
            if t == 0 and later:
                for x in later.pop(0):
                    e(x)
            if t == 0 and s + 2 < 40:
                for x in wr1(s + 2):
                    e(x)
        if s < 8 and later:
            for x in later.pop(0):
                e(x)
        if s >= 28:
            for x in rs[fi:fi + 6]:
                e(x)
            fi += 6
    assert not later
    for x in rs[fi:]:
        e(x)
    e.ts(18)

    WF2 = [80, 84, 88, 92]

    def wr2(s):
        return f'ds_read_b128 {v4(WF2[s % 4])}, v{vW[2]} offset:{s * 1024}'
    for s in range(3):
        e(wr2(s))
    fill = epi(0) + epi(1)
    w2 = groups_of(w2loads(20, 40))
    Z = vr(ACC[2], 16)
    s = 0
    for x in fill:
        if x == 'M':
            e(f'v_mfma_f32_32x32x16_bf16 {Z}, {v4(WF2[s % 4])}, {xreg(s)}, {"0" if s == 0 else Z}')
            if s + 3 < 40:
                e(wr2(s + 3))
            s += 1
        elif x == 'G':
            for _ in range(3):
                if w2:
                    for y in w2.pop(0):
                        e(y)
        else:
            e(x)
    assert s == 40, s
    assert not w2
    e.ts(22)
    for x in epi(2):
        if x not in ('M', 'G'):
            e(x)
    e.force_wait(vm=0)
    e('s_barrier')
    e(f's_lshl_b32 s62, {sI}, 4\n s_add_u32 s62, s62, {sJ}')
    publish_flag(e, FL_HH, 's62')
    for x in w2loads(40, 60):
        e(x)


def p5(e):
    ksplit_setup(e)
    e(f'''
    v_lshrrev_b32 v4, 4, v1
    s_mul_i32 s63, s61, 160
    v_lshlrev_b32 v7, 3, v4
    ''')
    B2R = 200
    for a in range(5):
        e(f'buffer_load_dwordx2 {v2(B2R + 2 * a)}, v7, {srd(S_B2)}, s63 offen offset:{32 * a}')
    sr = ['s96', 's97', 's98', 's99']
    for tau in range(4):
        e(f'''
        s_add_u32 s57, {sW}, {tau}
        s_and_b32 s57, s57, 3
        s_add_u32 s57, s57, s62
        s_mul_i32 s57, s57, 48
        s_mul_i32 s58, {sW}, 12
        s_add_u32 s57, s57, s58
        s_lshl_b32 s57, s57, 10
        s_add_u32 {sr[tau]}, s57, {WS_HH}
        ''')
    BF, ACC = 16, 112
    order = [1, 2, 3, 0]

    def loads(n):
        tau = order[n]
        out = []
        for s in range(12):
            if s and s % 4 == 0:
                out.append(f's_add_u32 {sr[tau]}, {sr[tau]}, 4096')
            out.append(f'buffer_load_dwordx4 {v4(BF + ((n & 1) * 12 + s) * 4)}, v2, {srd(S_WS)}, {sr[tau]} offen offset:{(s % 4) * 1024} sc1')
        return out
    for tau in range(1, 4):
        e(f'''
        s_add_u32 s57, {sW}, {tau}
        s_and_b32 s57, s57, 3
        s_mul_i32 s57, s57, 15360
        s_add_u32 s57, s57, {RED5 + (tau - 1) * 5120}
        v_add_u32 v{210 + tau}, s57, v2
        ''')
    e(f'''
    s_mul_i32 s57, {sW}, 15360
    s_add_u32 s57, s57, {RED5}
    v_add_u32 v210, s57, v2
    v_lshlrev_b32 v6, 4, v4
    v_add_u32 v6, {M2}, v6
    ''')
    GBv, X = 16, 36
    T = ACC + 20
    e(f'''
    s_add_u32 s57, s62, {sW}
    s_lshl_b32 s57, s57, 4
    s_mul_i32 s63, s57, 1280
    s_mul_i32 s58, s61, 160
    s_add_u32 s63, s63, s58
    v_and_b32 v3, 15, v1
    v_mul_u32_u24 v7, 1280, v3
    v_lshl_add_u32 v7, v4, 3, v7
    ''')
    e.ts(23)
    poll_group(e, FL_HH)
    e.ts(24)
    for x in loads(0):
        e(x)
    e.ts(43)
    for n, tau in enumerate(order):
        nxt = loads(n + 1) if n + 1 < 4 else []
        per_step = [[] for _ in range(12)]
        k = 0
        for x in nxt:
            per_step[k].append(x)
            if x.startswith('buffer'):
                k += 1
        fill = []
        if n >= 1:
            pt = order[n - 1]
            fill = [f'ds_write_b128 v{210 + pt}, {v4(ACC + (5 * pt + a) * 4)} offset:{a * 1024}' for a in range(5)]
        late = []
        if n == 3:
            late += [f'ds_read_b128 {v4(GBv + 4 * a)}, v6 offset:{M2_GB - M2 + 64 * a}' for a in range(5)]
            for sl in range(3):
                for a in range(5):
                    late.append(f'ds_read_b128 {v4(T + (5 * sl + a) * 4)}, v210 offset:{sl * 5120 + a * 1024}')
            for k2 in range(10):
                late.append(f'v_lshlrev_b32 v{X + 2 * k2}, 16, v{X1P + k2}')
                late.append(f'v_and_b32 v{X + 2 * k2 + 1}, 0xffff0000, v{X1P + k2}')
            for k2 in range(10):
                t = 192 + 2 * (k2 & 3)
                late.append(f'v_lshlrev_b32 v{t}, 16, v{B2R + k2}')
                late.append(f'v_and_b32 v{t + 1}, 0xffff0000, v{B2R + k2}')
                late.append(f'v_pk_fma_f32 {v2(X + 2 * k2)}, {v2(GBv + 2 * k2)}, {v2(t)}, {v2(X + 2 * k2)}')
        li = 0
        for s in range(12):
            for a in range(5):
                r = v4(ACC + (5 * tau + a) * 4)
                c = '0' if s == 0 else r
                b = BF + ((n & 1) * 12 + s) * 4
                e(f'v_mfma_f32_16x16x32_bf16 {r}, {a4((5 * s + a) * 4)}, {v4(b)}, {c}')
                if s in (1, 2) and fill and a < 3:
                    e(fill.pop(0))
                if n == 3 and s >= 4:
                    for x in late[li:li + 2]:
                        e(x)
                    li += 2
            for x in per_step[s]:
                e(x)
            if n == 3 and s == 3:
                e.wait(lg=0)
                e('s_barrier')
        for x in late[li:]:
            e(x)
        e.ts(44 + n)
    e.ts(25)
    for k in range(10):
        e(f'v_pk_add_f32 {v2(T + 2 * k)}, {v2(T + 2 * k)}, {v2(T + 20 + 2 * k)}')
        e(f'v_pk_add_f32 {v2(ACC + 2 * k)}, {v2(ACC + 2 * k)}, {v2(T + 40 + 2 * k)}')
    for k in range(10):
        e(f'v_pk_add_f32 {v2(ACC + 2 * k)}, {v2(ACC + 2 * k)}, {v2(T + 2 * k)}')
    for k in range(10):
        e(f'v_pk_fma_f32 {v2(X + 2 * k)}, {v2(GBv + 2 * k)}, {v2(ACC + 2 * k)}, {v2(X + 2 * k)}')
    for k in range(10):
        e(f'v_cvt_pk_bf16_f32 v{64 + k}, v{X + 2 * k}, v{X + 2 * k + 1}')
    for a in range(5):
        e(f'buffer_store_dwordx2 {v2(64 + 2 * a)}, v7, {srd(S_OUT)}, s63 offen offset:{32 * a}')


def p3_all(e, ts, upto):
    p3(e)
    ts(5)
    if upto >= 4:
        p4(e)
        ts(6)
    if upto >= 5:
        p5(e)
        ts(7)
```

```python
import sys, argparse
from emit import E
from wrap import *
from common import *
import p0, p1

HEADER = open('cdna_kernels/' + NAME + '.s.ref').read().split('; Override launch')[0].rstrip('\n')

def timestamp(e, idx, dbg, anywave=False):
    if not dbg: return
    lbl = e.new_label('TS')
    if not anywave:
        e(f'''s_cmp_lg_u32 {sW}, 0
        s_cbranch_scc1 {lbl}''')
    e.raw('s_memrealtime s[100:101]')
    e.raw('s_waitcnt lgkmcnt(0)')
    e.raw('v_mov_b32 v254, s100')
    e.raw('s_memtime s[100:101]')
    e.raw('s_waitcnt lgkmcnt(0)')
    e.raw('v_mov_b32 v255, s100')
    e.raw(f's_lshl_b32 s101, {sB}, 9')
    e.raw(f's_add_u32 s101, s101, {WS_TS + 8 * idx}')
    e.raw('s_mov_b64 exec, 1')
    e.raw(f'buffer_store_dwordx2 v[254:255], off, {srd(S_WS)}, s101')
    e.raw('s_nop 1')
    e.raw('s_mov_b64 exec, -1')
    e.label(lbl)

def build(upto=99, dbg=False):
    e = E()
    e.ts = lambda k, anyw=False: timestamp(e, k, dbg, anyw)
    END = 'L_END'
    p0.prologue(e, END)
    timestamp(e, 0, dbg)
    p0.p0(e, END, 'L_CODE_END')
    timestamp(e, 8, dbg)
    if upto >= 1:
        p1.p1_all(e)
        timestamp(e, 3, dbg)
    if upto >= 2:
        import p2
        p2.p2_all(e)
        timestamp(e, 4, dbg)
    if upto >= 3:
        import p3
        p3.p3_all(e, lambda k: timestamp(e, k, dbg), upto)
    lbl = e.new_label('EP')
    e.settle()
    e(f'''s_or_b32 s57, {sB}, {sW}
    s_cmp_lg_u32 s57, 0
    s_cbranch_scc1 {lbl}
    v_mov_b32 v3, {sTAG}
    v_mov_b32 v4, 0
    s_mov_b64 exec, 1''')
    e.raw(f'buffer_store_dword v3, v4, {srd(S_WS)}, 0 offen')
    e.label(lbl)
    timestamp(e, 31, dbg)
    e.label(END)
    e.raw('s_endpgm')
    for x in e.cold:
        e.out.append(x)
    e.label('L_CODE_END')
    import os, align
    if os.environ.get('ALIGN', '1') == '1':
        print('align (promoted, nops):', align.align(e))
    k = kernel_wrap(NAME + '_kernel', e.text(), vgpr=256, agpr=256, sgpr=102)
    txt = file_wrap([(NAME + '_kernel', (256, 1, 1), (256, 1, 1), LDS_SIZE)], [k], header=HEADER, single=True)
    return txt, e

if __name__ == '__main__':
    ap = argparse.ArgumentParser()
    ap.add_argument('--upto', type=int, default=99)
    ap.add_argument('--dbg', action='store_true')
    ap.add_argument('-o', default='k.s')
    a = ap.parse_args()
    txt, e = build(a.upto, a.dbg)
    open(a.o, 'w').write(txt)
    print(a.o, len(txt), 'bytes', e.stat)
```

```python
from common import *

LOG2E = 1.4426950408889634
SPIN_MAX = 400000


def f2u(x):
    import struct
    return struct.unpack('<I', struct.pack('<f', x))[0]


def hexf(x):
    return hex(f2u(x))


SRD_TAB = {S_X: (64, 2621440), S_WQKV: (66, 2457600), S_WO: (68, 819200), S_W1: (72, 1966080), S_W2: (76, 1966080),
           S_WMOD: (82, 4915200), S_OUT: (84, 2621440), S_WS: (88, WS_SIZE), S_C: (80, 1280), S_B1: (74, 3072), S_B2: (78, 1280)}


def build_srd(e, sr):
    p, size = SRD_TAB[sr]
    e(f'''
    s_mov_b32 s{sr}, s{p}
    s_and_b32 s{sr + 1}, s{p + 1}, 0xffff
    s_mov_b32 s{sr + 2}, {size}
    s_mov_b32 s{sr + 3}, 0x20000
    ''')


def prologue(e, end_label):
    import os
    if os.environ.get('MAP', '42') == '81':
        MAP = f'''s_and_b32 {sJ}, s58, 15
    s_lshr_b32 s58, s58, 4
    s_lshl_b32 s57, s57, 1
    s_add_u32 {sI}, s57, s58'''
    else:
        MAP = f'''s_and_b32 {sJ}, s58, 7
    s_and_b32 s59, s57, 1
    s_lshl_b32 s59, s59, 3
    s_add_u32 {sJ}, {sJ}, s59
    s_lshr_b32 s58, s58, 3
    s_lshr_b32 s57, s57, 1
    s_lshl_b32 s57, s57, 2
    s_add_u32 {sI}, s57, s58'''
    e(f'''
    s_cmp_ge_u32 s2, 256
    s_cbranch_scc1 {end_label}
    s_load_dwordx16 s[64:79], s[0:1], 0
    s_load_dwordx8 s[80:87], s[0:1], 64
    s_load_dwordx2 s[88:89], s[0:1], 96
    v_and_b32 v1, 63, v0
    v_lshrrev_b32 v3, 6, v0
    s_mov_b32 {sB}, s2
    s_and_b32 s57, s2, 7
    s_lshr_b32 s58, s2, 3              ; t
    v_readfirstlane_b32 {sW}, v3
    {MAP}
    v_lshlrev_b32 v2, 4, v1
    ''')
    e.force_wait(lg=0)
    e('s_load_dword s90, s[88:89], 0')
    for sr in (S_X, S_C, S_WMOD, S_WQKV, S_WS, S_WO, S_W1, S_W2, S_OUT, S_B1, S_B2):
        build_srd(e, sr)


def get_tag(e):
    e.force_wait(lg=0)
    e(f's_add_u32 {sTAG}, s90, 0x9e3779b9')


def dpp_rowsum(e, r):
    for n in (8, 4, 2, 1):
        e(f'v_add_f32_dpp v{r}, v{r}, v{r} row_ror:{n} row_mask:0xf bank_mask:0xf')


LDS_MISC = 147456
LN_T = LDS_MISC
SIG = LDS_MISC + 12800
CST = LDS_MISC + 12864


def wave_flag(e, base, idx_sgpr):
    e(f'''
    s_lshl_b32 s57, {idx_sgpr}, 7
    s_add_u32 s57, s57, {base}
    v_mov_b32 v3, {sTAG}
    v_mov_b32 v4, 0
    s_mov_b64 exec, 1
    ''')
    e.raw(f'buffer_store_dword v3, v4, {srd(S_WS)}, s57 offen sc1')
    e.raw('s_nop 1')
    e('s_mov_b64 exec, -1')


def p0_ln(e):
    XR, XF = 16, 40
    e(f'''
    s_lshl_b32 s57, {sI}, 7
    s_lshl_b32 s58, {sJ}, 3
    s_add_u32 s57, s57, s58            ; T0
    s_mul_i32 s58, s57, 1280
    v_lshrrev_b32 v3, 4, v0            ; r = tid>>4  (0..7)
    v_and_b32 v4, 15, v0               ; c16
    v_mul_u32_u24 v5, 1280, v3
    v_lshl_add_u32 v5, v4, 4, v5
    ''')
    for u in range(5):
        e(f'buffer_load_dwordx4 {v4(XR + 4 * u)}, v5, {srd(S_X)}, s58 offen offset:{256 * u}')
    e(f'''
    s_mul_i32 s59, {sW}, 6400
    s_add_u32 s59, s59, {LN_T}
    v_and_b32 v3, 3, v3
    v_mul_u32_u24 v12, 80, v4
    v_lshl_add_u32 v12, v3, 4, v12
    v_add_u32 v12, s59, v12
    v_lshrrev_b32 v5, 2, v1            ; gi_local
    v_and_b32 v7, 3, v1                ; token
    v_mul_u32_u24 v13, 80, v5
    v_lshl_add_u32 v13, v7, 4, v13
    v_add_u32 v13, s59, v13
    v_lshrrev_b32 v14, 1, v5
    v_lshlrev_b32 v14, 10, v14
    v_and_b32 v5, 1, v5
    v_lshl_add_u32 v14, v5, 9, v14
    v_lshl_add_u32 v14, v7, 4, v14
    s_lshl_b32 s58, {sI}, 2
    s_lshr_b32 s59, {sJ}, 2
    s_add_u32 s58, s58, s59            ; tb32
    s_mul_i32 s58, s58, 40960
    s_and_b32 s59, {sJ}, 3
    s_lshl_b32 s59, s59, 7
    s_add_u32 s58, s58, s59
    s_lshl_b32 s59, {sW}, 6            ; 4 tokens * 16 B
    s_add_u32 s58, s58, s59
    s_add_u32 s62, s58, {WS_XN}
    ''')
    get_tag(e)
    e.ts(52)
    e.wait(vm=0)
    import os
    if os.environ.get('SIGAT', 'load') == 'load':
        e(f'v_mov_b32 v5, {SIG}\n v_mov_b32 v7, {sTAG}\n ds_write_b32 v5, v7')
    e.ts(53)
    for d in range(20):
        e(f'v_lshlrev_b32 v{XF + 2 * d}, 16, v{XR + d}')
        e(f'v_and_b32 v{XF + 2 * d + 1}, 0xffff0000, v{XR + d}')
    e(f'v_pk_add_f32 v[6:7], {v2(XF)}, {v2(XF + 2)}')
    e(f'v_pk_add_f32 v[8:9], {v2(XF + 4)}, {v2(XF + 6)}')
    for d in range(4, 20, 2):
        e(f'v_pk_add_f32 v[6:7], v[6:7], {v2(XF + 2 * d)}')
        e(f'v_pk_add_f32 v[8:9], v[8:9], {v2(XF + 2 * d + 2)}')
    e('v_pk_add_f32 v[6:7], v[6:7], v[8:9]')
    e('v_add_f32 v6, v6, v7')
    dpp_rowsum(e, 6)
    e(f'v_mul_f32 v6, {hexf(-1.0 / 640)}, v6')
    for d in range(20):
        e(f'v_pk_add_f32 {v2(XF + 2 * d)}, {v2(XF + 2 * d)}, v[6:7] op_sel_hi:[1,0]')
    e(f'v_pk_mul_f32 v[8:9], {v2(XF)}, {v2(XF)}')
    e(f'v_pk_mul_f32 v[10:11], {v2(XF + 2)}, {v2(XF + 2)}')
    for d in range(2, 20, 2):
        e(f'v_pk_fma_f32 v[8:9], {v2(XF + 2 * d)}, {v2(XF + 2 * d)}, v[8:9]')
        e(f'v_pk_fma_f32 v[10:11], {v2(XF + 2 * d + 2)}, {v2(XF + 2 * d + 2)}, v[10:11]')
    e('v_pk_add_f32 v[8:9], v[8:9], v[10:11]')
    e('v_add_f32 v8, v8, v9')
    dpp_rowsum(e, 8)
    e(f'v_mov_b32 v9, {hexf(1e-5)}')
    e(f'v_mov_b32 v10, {hexf(1.0 / 640)}')
    e('v_fma_f32 v8, v8, v10, v9')
    e('v_rsq_f32 v8, v8')
    for u in range(5):
        for d in range(4 * u, 4 * u + 4):
            e(f'v_pk_mul_f32 {v2(XF + 2 * d)}, {v2(XF + 2 * d)}, v[8:9] op_sel_hi:[1,0]')
        for d in range(4 * u, 4 * u + 4):
            e(f'v_cvt_pk_f16_f32 v{XR + d}, v{XF + 2 * d}, v{XF + 2 * d + 1}')
        e(f'ds_write_b128 v12, {v4(XR + 4 * u)} offset:{u * 16 * 80}')
    e.wait(lg=0)
    for u in range(5):
        e(f'ds_read_b128 {v4(XF + 4 * u)}, v13 offset:{u * 16 * 80}')
    for u in range(5):
        e(f'buffer_store_dwordx4 {v4(XF + 4 * u)}, v14, {srd(S_WS)}, s62 offen sc1')
        if u < 4:
            e('s_add_u32 s62, s62, 8192')
    e(f'''
    s_lshl_b32 s58, {sI}, 4
    s_add_u32 s58, s58, {sJ}
    s_lshl_b32 s58, s58, 1
    s_add_u32 s58, s58, {sW}
    ''')
    if os.environ.get('SIGAT', 'load') == 'store':
        e(f'v_mov_b32 v5, {SIG}\n v_mov_b32 v7, {sTAG}\n ds_write_b32 v5, v7')
    e.ts(54)
    e.settle()
    e.ts(55)
    wave_flag(e, FL_XN, 's58')
    e(f's_lshl_b32 s57, {sW}, 2\n s_add_u32 s57, s57, {SIG + 8}\n v_mov_b32 v5, s57\n v_mov_b32 v7, {sTAG}\n ds_write_b32 v5, v7')
    e.wait(lg=0)
    if os.environ.get('SIGAT', 'load') == 'drain':
        e(f'v_mov_b32 v5, {SIG}\n v_mov_b32 v7, {sTAG}\n ds_write_b32 v5, v7')
        e.wait(lg=0)


def gemv_unit(e, stamp=False):
    WR, CR, SV = 16, 96, 116
    e(f'''
    s_mul_i32 s59, s61, 160            ; k0
    s_lshl_b32 s62, s59, 1
    s_mul_i32 s63, s59, 7680
    s_lshl_b32 s58, s60, 7
    s_add_u32 s63, s63, s58
    v_lshrrev_b32 v3, 3, v1            ; l>>3
    v_and_b32 v4, 7, v1
    v_mul_u32_u24 v5, 7680, v3
    v_lshl_add_u32 v5, v4, 4, v5
    v_lshlrev_b32 v6, 1, v1
    v_min_u32 v7, 31, v1
    v_lshlrev_b32 v7, 1, v7
    ''')
    e(f'buffer_load_ushort v{CR}, v6, {srd(S_C)}, s62 offen')
    e(f'buffer_load_ushort v{CR + 1}, v6, {srd(S_C)}, s62 offen offset:128')
    e(f'buffer_load_ushort v{CR + 2}, v7, {srd(S_C)}, s62 offen offset:256')
    for u in range(20):
        e(f'buffer_load_dwordx4 {v4(WR + 4 * u)}, v5, {srd(S_WMOD)}, s63 offen')
        if u < 19:
            e('s_add_u32 s63, s63, 61440')
    T = 160
    rng = range(3)
    for u in rng:
        e(f'v_lshlrev_b32 v{CR + u}, 16, v{CR + u}')
    for u in rng:
        e(f'v_mul_f32 v{T + u}, {hexf(-LOG2E)}, v{CR + u}')
    for u in rng:
        e(f'v_exp_f32 v{T + u}, v{T + u}')
    for u in rng:
        e(f'v_add_f32 v{T + u}, 1.0, v{T + u}')
    for u in rng:
        e(f'v_rcp_f32 v{T + u}, v{T + u}')
    for u in rng:
        e(f'v_mul_f32 v{T + u}, v{CR + u}, v{T + u}')
    for u in rng:
        e(f'v_cvt_pk_bf16_f32 v{T + u}, v{T + u}, v{T + u}')
    for u in rng:
        e(f'v_lshlrev_b32 v{T + u}, 16, v{T + u}')
    e(f'''
    v_lshlrev_b32 v6, 2, v1
    v_add_u32 v6, {CST}, v6
    v_lshlrev_b32 v7, 1, v7
    v_add_u32 v7, {CST + 512}, v7
    ds_write_b32 v6, v{T}
    ds_write_b32 v6, v{T + 1} offset:256
    ds_write_b32 v7, v{T + 2}
    v_lshlrev_b32 v6, 2, v3
    v_add_u32 v6, {CST}, v6
    ''')
    e.wait(lg=0)
    for u in range(20):
        e(f'ds_read_b32 v{SV + 2 * u}, v6 offset:{32 * u}')
    if stamp:
        e.wait(vm=0)
        e.ts(57, True)
    ACC = 8
    for u in range(20):
        for d in range(4):
            t = 172 + 2 * (d & 1) + 4 * (u & 1)
            e(f'v_lshlrev_b32 v{t}, 16, v{WR + 4 * u + d}')
            e(f'v_and_b32 v{t + 1}, 0xffff0000, v{WR + 4 * u + d}')
            if u == 0:
                e(f'v_pk_mul_f32 {v2(ACC + 2 * d)}, {v2(t)}, {v2(SV + 2 * u)} op_sel_hi:[1,0]')
            else:
                e(f'v_pk_fma_f32 {v2(ACC + 2 * d)}, {v2(t)}, {v2(SV + 2 * u)}, {v2(ACC + 2 * d)} op_sel_hi:[1,0,1]')
    for k in range(8):
        e(f'v_add_f32_dpp v{ACC + k}, v{ACC + k}, v{ACC + k} row_ror:8 row_mask:0xf bank_mask:0xf')
    for swp in ('v_permlane16_swap_b32', 'v_permlane32_swap_b32'):
        for k in range(8):
            e(f'v_mov_b32 v{20 + k}, v{ACC + k}')
        for k in range(8):
            e(f'{swp} v{ACC + k}, v{20 + k}')
        for k in range(8):
            e(f'v_add_f32 v{ACC + k}, v{ACC + k}, v{20 + k}')
    e(f'''
    s_mul_i32 s58, s61, 15360
    s_lshl_b32 s59, s60, 8
    s_add_u32 s58, s58, s59
    s_add_u32 s58, s58, {WS_MODP}
    v_lshlrev_b32 v6, 5, v4
    v_mov_b32 v7, 0xf0000000
    v_cmp_gt_u32 vcc, 8, v1
    v_cndmask_b32 v6, v7, v6, vcc
    buffer_store_dwordx4 v[8:11], v6, {srd(S_WS)}, s58 offen sc1
    buffer_store_dwordx4 v[12:15], v6, {srd(S_WS)}, s58 offen offset:16 sc1
    ''')


def wait_signal(e, addr=None, n=1):
    lp, dn = e.new_label('SIGL'), e.new_label('SIGD')
    if n == 1:
        e(f'v_mov_b32 v5, {SIG if addr is None else addr}\n s_mov_b32 s57, 0')
    else:
        e(f'v_and_b32 v5, 1, v1\n v_lshlrev_b32 v5, 2, v5\n v_add_u32 v5, {addr}, v5\n s_mov_b32 s57, 0')
    e.label(lp)
    e.raw('ds_read_b32 v7, v5')
    e.raw('s_waitcnt lgkmcnt(0)')
    e.raw(f'v_cmp_ne_u32 vcc, {sTAG}, v7')
    e.raw('s_add_u32 s57, s57, 1')
    e.raw(f's_cmp_gt_u32 s57, {SPIN_MAX}')
    e.raw(f's_cbranch_scc1 {dn}')
    e.raw(f's_cbranch_vccnz {lp}')
    e.label(dn)


def wq_dma_addr(e, vreg):
    e(f'''
    v_lshrrev_b32 v3, 4, v1
    v_lshlrev_b32 v4, 2, v3
    v_sub_u32 v4, v1, v4
    v_and_b32 v4, 15, v4
    v_mul_u32_u24 v{vreg}, 3840, v3
    v_lshl_add_u32 v{vreg}, v4, 4, v{vreg}
    ''')


def wq_dma_chunk_1wave(e, vreg, chunk, slot, sCol):
    for u in range(16):
        e(f'''
        s_mov_b32 m0, {slot * 16384 + u * 1024}
        s_add_u32 s57, {sCol}, {(64 * chunk + 4 * u) * 3840}
        ''')
        e(f'buffer_load_dwordx4 v{vreg}, {srd(S_WQKV)}, s57 offen lds')


def code_prefetch(e, start_label, end_label):
    e(f'''
    s_getpc_b64 s[92:93]
    ''')
    here = e.new_label('PCH')
    e.label(here)
    e(f'''
    s_lshr_b32 s57, {sB}, 3
    s_lshl_b32 s57, s57, 11
    v_add_u32 v10, s57, v2
    v_add_u32 v11, 1024, v10
    v_min_u32 v10, {end_label}-{here}-16, v10
    v_min_u32 v11, {end_label}-{here}-16, v11
    global_load_dwordx4 a[248:251], v10, s[92:93]
    global_load_dwordx4 a[252:255], v11, s[92:93]
    ''')


def p0(e, end_label, code_end):
    LG, LD, LJ = e.new_label('P0G'), e.new_label('P0DM'), e.new_label('P0J')
    e(f'''
    s_cmp_eq_u32 {sW}, 2
    s_cbranch_scc1 {LG}
    s_cmp_eq_u32 {sW}, 3
    s_cbranch_scc1 {LD}
    ''')
    snap = (e.vm_n, e.lg_n)
    p0_ln(e)
    e(f's_branch {LJ}')
    e.label(LG)
    e.assume_settled()
    e.smem_pend.update(['s90', '_smem'])
    LLATE = e.new_label('GL')
    e(f'''
    s_cmp_ge_u32 {sB}, 80
    s_cbranch_scc1 {LLATE}
    s_mul_i32 s61, {sB}, 3277
    s_lshr_b32 s61, s61, 16            ; ks = b/20
    s_mul_i32 s60, s61, 20
    s_sub_u32 s60, {sB}, s60           ; cg
    ''')
    e.ts(56, True)
    gemv_unit(e, True)
    get_tag(e)
    e.ts(58, True)
    e.settle()
    e.ts(59, True)
    wave_flag(e, FL_MOD, sB)
    e(f's_branch {LJ}')
    e.label(LLATE)
    e.assume_settled()
    e.smem_pend.update(['s90', '_smem'])
    get_tag(e)
    import os
    if os.environ.get('MT2', '1') == '1':
        if os.environ.get('MT2AT', 'drain') == 'drain':
            wait_signal(e, SIG + 8, 2)
        else:
            wait_signal(e)
        e(f'''
        s_sub_u32 s58, {sB}, 80             ; 0..175
        v_lshlrev_b32 v10, 7, v1            ; lane*128
        ''')
        for (sr, lines) in ((S_WO, 6400), (S_W1, 15360), (S_W2, 15360)):
            per = (lines + 175) // 176
            e(f's_mul_i32 s59, s58, {per * 128}')
            for k in range((per + 63) // 64):
                n = min(64, per - 64 * k)
                e(f'''
                v_mov_b32 v12, 0xf0000000
                v_cmp_gt_u32 vcc, {n}, v1
                v_cndmask_b32 v11, v12, v10, vcc
                buffer_load_dword a244, v11, {srd(sr)}, s59 offen offset:0
                s_add_u32 s59, s59, 8192
                ''')
        per = 146
        for k in range(3):
            n = min(64, per - 64 * k)
            e(f'''
            s_mul_i32 s59, s58, {per}
            s_add_u32 s59, s59, {64 * k}
            v_add_u32 v8, s59, v1
            v_mul_u32_u24 v9, 52429, v8
            v_lshrrev_b32 v9, 21, v9
            v_mul_u32_u24 v11, 40, v9
            v_sub_u32 v11, v8, v11
            v_lshlrev_b32 v11, 7, v11
            v_mul_u32_u24 v9, 7680, v9
            v_add_u32 v11, v11, v9
            v_add_u32 v11, 2560, v11
            v_mov_b32 v12, 0xf0000000
            v_cmp_gt_u32 vcc, {n}, v1
            v_cndmask_b32 v11, v12, v11, vcc
            buffer_load_dword a244, v11, {srd(S_WMOD)}, 0 offen
            ''')
        for x in range(0, 25700):
            assert (x * 52429) >> 21 == x // 40 or x * 52429 >= (1 << 32)
    e(f's_branch {LJ}')
    e.label(LD)
    e.assume_settled()
    e.smem_pend.update(['s90', '_smem'])
    import os
    if os.environ.get('MT', '1') == '1':
        e(f'''
        s_mul_i32 s58, {sB}, 9600
        v_lshlrev_b32 v10, 7, v1
        v_add_u32 v11, 8192, v10
        v_mov_b32 v12, 0xf0000000
        v_cmp_gt_u32 vcc, 11, v1
        v_cndmask_b32 v11, v12, v11, vcc
        buffer_load_dword a246, v10, {srd(S_WQKV)}, s58 offen
        buffer_load_dword a247, v11, {srd(S_WQKV)}, s58 offen
        ''')
    code_prefetch(e, None, code_end)
    get_tag(e)
    e(f'''
    s_lshl_b32 s96, {sJ}, 8
    s_cmp_eq_u32 {sJ}, 15
    s_cbranch_scc1 {LJ}
    ''')
    wq_dma_addr(e, 15)
    e(f'''
    s_and_b32 s58, {sI}, 1
    s_add_u32 s58, s58, 256
    s_mul_i32 s58, s58, 3840
    s_add_u32 s58, s58, s96
    v_lshrrev_b32 v10, 1, v1
    v_mul_u32_u24 v10, 7680, v10
    v_and_b32 v11, 1, v1
    v_lshl_add_u32 v10, v11, 7, v10
    ''')
    e.ts(60, True)
    wait_signal(e)
    e.ts(61, True)
    import os
    thr = int(os.environ.get('WTHR', 24))
    n = 0
    for q in range(0, 4):
        for u in range(16):
            e(f'''
            s_mov_b32 m0, {q * 16384 + u * 1024}
            s_add_u32 s57, s96, {(64 * q + 4 * u) * 3840}
            ''')
            e(f'buffer_load_dwordx4 v15, {srd(S_WQKV)}, s57 offen lds')
            n += 1
            if n > thr and n % 4 == 0:
                e.force_wait(vm=thr)
            if os.environ.get('WT', '0') == '1' and u in (5, 11) and q < 3:
                k = 2 * q + (u == 11)
                e(f's_add_u32 s59, s58, {k * 64 * 3840}')
                e(f'buffer_load_dword a246, v10, {srd(S_WQKV)}, s59 offen')
    e.force_wait(vm=14)
    e.ts(62, True)
    e.label(LJ)
    e.assume_settled(14)
    for b in range(300):
        assert (b * 3277) >> 16 == b // 20 or b >= 80
        assert (b * 1639) >> 16 == b // 40 or b >= 160


N_W2, N_W1A, N_W1B, N_WOM, N_WOT = 480, 384, 96, 160, 40
U_W1A = N_W2
U_W1B = U_W1A + N_W1A
U_WOM = U_W1B + N_W1B
U_WOT = U_WOM + N_WOM
U_END = U_WOT + N_WOT
RL_V = 208
RL_S = 64
RL_STAGE = 16384


def divmod_s(e, q, r, x, d, lim):
    m = (65536 + d - 1) // d
    for xx in range(lim):
        assert (xx * m) >> 16 == xx // d, (xx, d)
    e(f'''
    s_mul_i32 {q}, {x}, {m}
    s_lshr_b32 {q}, {q}, 16
    s_mul_i32 {r}, {q}, {d}
    s_sub_u32 {r}, {x}, {r}
    ''')


def relayout_setup(e, rnd):
    V = RL_V + 8 * rnd
    S = RL_S + 8 * rnd
    sU = 's80'
    LW2, LWOM, LWOT, LW1A, LW1B, L16, L32, LNONE, LD = (e.new_label(x) for x in ('RW2', 'RWOM', 'RWOT', 'RW1A', 'RW1B', 'RL16', 'RL32', 'RLN', 'RLD'))
    e(f'''
    s_lshl_b32 {sU}, {sB}, 2
    s_add_u32 {sU}, {sU}, {sW}
    s_add_u32 {sU}, {sU}, {1024 * rnd}
    s_lshl_b32 s81, {sW}, 12
    s_add_u32 s81, s81, {RL_STAGE + 16384 * rnd}
    v_lshrrev_b32 v3, 3, v1            ; jj
    v_and_b32 v4, 7, v1                ; granule
    v_and_b32 v5, 3, v3
    v_lshrrev_b32 v6, 2, v3
    s_cmp_ge_u32 {sU}, {U_END}
    s_cbranch_scc1 {LNONE}
    s_cmp_lt_u32 {sU}, {U_W1A}
    s_cbranch_scc1 {LW2}
    s_cmp_lt_u32 {sU}, {U_W1B}
    s_cbranch_scc1 {LW1A}
    s_cmp_lt_u32 {sU}, {U_WOM}
    s_cbranch_scc1 {LW1B}
    s_cmp_lt_u32 {sU}, {U_WOT}
    s_cbranch_scc1 {LWOM}
    s_branch {LWOT}
    ''')

    def srdcopy(src):
        e(f'''
        s_mov_b32 s{S}, s{src}
        s_mov_b32 s{S + 1}, s{src + 1}
        s_mov_b32 s{S + 2}, s{src + 2}
        s_mov_b32 s{S + 3}, 0x20000
        ''')
    e.label(LW2)
    divmod_s(e, 's82', 's83', sU, 10, 480)
    e(f'''
    v_lshl_add_u32 v7, v6, 3, v5
    s_lshl_b32 s84, s82, 5
    s_mov_b32 s85, 0
    s_mov_b32 s86, 4
    s_mov_b32 s87, 16
    s_mov_b32 s88, 20
    s_mov_b32 s89, {WS_W2F}
    s_mov_b32 s91, 48
    ''')
    srdcopy(S_W2)
    e(f's_branch {L16}')
    e.label(LWOM)
    e(f's_sub_u32 s57, {sU}, {U_WOM}')
    divmod_s(e, 's82', 's83', 's57', 10, 160)
    e(f'''
    v_lshl_add_u32 v7, v6, 3, v5
    s_mul_i32 s84, s82, 40
    s_mov_b32 s85, 0
    s_mov_b32 s86, 4
    s_mov_b32 s87, 20
    s_mov_b32 s88, 24
    s_mov_b32 s89, {WS_WOF}
    s_mov_b32 s91, 20
    ''')
    srdcopy(S_WO)
    e(f's_branch {L16}')
    e.label(LWOT)
    e(f's_sub_u32 s57, {sU}, {U_WOT}')
    divmod_s(e, 's82', 's83', 's57', 10, 40)
    e(f'''
    v_mul_u32_u24 v7, 20, v6
    v_add_u32 v7, v7, v5
    s_mul_i32 s84, s82, 160
    s_add_u32 s82, s82, 16
    s_mov_b32 s85, 16
    s_mov_b32 s86, 56
    s_mov_b32 s87, 96
    s_mov_b32 s88, 136
    s_mov_b32 s89, {WS_WOF}
    s_mov_b32 s91, 20
    ''')
    srdcopy(S_WO)
    e.label(L16)
    e(f'''
    v_mul_u32_u24 v7, 1280, v7
    v_lshl_add_u32 v7, v4, 4, v7
    s_lshl_b32 s58, s83, 7
    ''')
    for u in range(4):
        e(f'''
        s_add_u32 s57, s84, s{85 + u}
        s_mul_i32 s57, s57, 1280
        s_add_u32 s57, s57, s58
        v_add_u32 v{V + u}, s57, v7
        ''')
    e(f'''
    v_lshrrev_b32 v8, 4, v1            ; g
    v_bfe_u32 v9, v1, 2, 2             ; r
    v_lshl_add_u32 v8, v8, 3, v9
    v_lshlrev_b32 v8, 7, v8
    v_and_b32 v9, 3, v1
    v_lshl_add_u32 v8, v9, 3, v8
    v_add_u32 v8, s81, v8
    ''')
    for q in range(4):
        e(f'v_add_u32 v{V + 4 + q}, {32 * q}, v8')
        e(f's_lshl_b32 s58, s83, 2\n s_add_u32 s58, s58, {q}')
        divmod_s(e, 's59', 's60', 's58', 5, 40)
        e(f'''
        s_mul_i32 s59, s59, s91
        s_add_u32 s59, s59, s82
        s_mul_i32 s59, s59, 5
        s_add_u32 s59, s59, s60
        s_lshl_b32 s59, s59, 10
        s_add_u32 s{S + 4 + q}, s59, s89
        ''')
    e(f's_branch {LD}')
    e.label(LW1A)
    e(f's_sub_u32 s57, {sU}, {U_W1A}')
    divmod_s(e, 's58', 's59', 's57', 24, 384)
    e(f'''
    s_lshr_b32 s60, s58, 1             ; cs
    s_and_b32 s58, s58, 1              ; hf
    v_lshl_add_u32 v7, v6, 4, v5
    s_mul_i32 s84, s60, 80
    s_lshl_b32 s63, s58, 5
    s_add_u32 s84, s84, s63
    s_mov_b32 s85, 0
    s_mov_b32 s86, 4
    s_mov_b32 s87, 8
    s_mov_b32 s88, 12
    s_lshl_b32 s82, s59, 7
    s_mov_b32 s83, s82
    s_mul_i32 s89, s60, 5
    s_lshl_b32 s63, s58, 1
    s_add_u32 s89, s89, s63
    s_add_u32 s91, s89, 1
    s_lshl_b32 s61, s59, 1
    s_mov_b32 s62, s61
    s_branch {L32}
    ''')
    e.label(LW1B)
    e(f's_sub_u32 s57, {sU}, {U_W1B}')
    divmod_s(e, 's60', 's59', 's57', 12, 96)
    e(f'''
    v_mov_b32 v7, v3
    s_mul_i32 s84, s60, 80
    s_add_u32 s84, s84, 64
    s_mov_b32 s85, 0
    s_mov_b32 s86, 8
    s_mov_b32 s87, 0
    s_mov_b32 s88, 8
    s_lshl_b32 s82, s59, 8
    s_add_u32 s83, s82, 128
    s_mul_i32 s89, s60, 5
    s_add_u32 s89, s89, 4
    s_mov_b32 s91, s89
    s_lshl_b32 s61, s59, 2
    s_add_u32 s62, s61, 2
    ''')
    e.label(L32)
    srdcopy(S_W1)
    e(f'''
    v_mul_u32_u24 v7, 3072, v7
    v_lshl_add_u32 v7, v4, 4, v7
    ''')
    for u in range(4):
        col = 's82' if u < 2 else 's83'
        e(f'''
        s_add_u32 s57, s84, s{85 + u}
        s_mul_i32 s57, s57, 3072
        s_add_u32 s57, s57, {col}
        v_add_u32 v{V + u}, s57, v7
        ''')
    e(f'''
    v_lshrrev_b32 v8, 5, v1            ; h
    v_bfe_u32 v9, v1, 2, 2             ; r
    v_lshl_add_u32 v8, v8, 3, v9
    v_lshlrev_b32 v8, 7, v8
    v_bfe_u32 v9, v1, 4, 1
    v_lshl_add_u32 v8, v9, 5, v8
    v_and_b32 v9, 3, v1
    v_lshl_add_u32 v8, v9, 3, v8
    v_add_u32 v8, s81, v8
    ''')
    for sg in range(2):
        for q in range(2):
            k = 2 * sg + q
            ft = 's61' if sg == 0 else 's62'
            st = 's89' if sg == 0 else 's91'
            e(f'''
            v_add_u32 v{V + 4 + k}, {2048 * sg + 64 * q}, v8
            s_add_u32 s57, {ft}, {q}
            s_mul_i32 s57, s57, 40
            s_add_u32 s57, s57, {st}
            s_lshl_b32 s57, s57, 10
            s_add_u32 s{S + 4 + k}, s57, {WS_W1F}
            ''')
    e(f's_branch {LD}')
    e.label(LNONE)
    srdcopy(S_W1)
    for u in range(4):
        e(f'''
        v_mov_b32 v{V + u}, 0xf0000000
        v_add_u32 v{V + 4 + u}, s81, v2
        s_mov_b32 s{S + 4 + u}, 0x7ffff000
        ''')
    e.label(LD)


def relayout_issue_list(rnd, wave_stage_sgpr):
    V = RL_V + 8 * rnd
    S = RL_S + 8 * rnd
    out = []
    for u in range(4):
        out.append(f's_add_u32 m0, {wave_stage_sgpr}, {RL_STAGE + 16384 * rnd + 1024 * u}')
        out.append(f'buffer_load_dwordx4 v{V + u}, s[{S}:{S + 3}], 0 offen lds')
    return out


def relayout_read_list(rnd, R):
    V = RL_V + 8 * rnd
    out = []
    for k in range(4):
        out.append(f'ds_read_b64_tr_b16 {v2(R + 4 * k)}, v{V + 4 + k}')
        out.append(f'ds_read_b64_tr_b16 {v2(R + 4 * k + 2)}, v{V + 4 + k} offset:512')
    return out


def relayout_store_list(rnd, R):
    S = RL_S + 8 * rnd
    return [f'buffer_store_dwordx4 {v4(R + 4 * k)}, v2, {srd(S_WS)}, s{S + 4 + k} offen sc1' for k in range(4)]


def second_unit_branch(e, label):
    e(f'''
    s_lshl_b32 s57, {sB}, 2
    s_add_u32 s57, s57, {sW}
    s_cmp_ge_u32 s57, {U_END - 1024}
    s_cbranch_scc1 {label}
    ''')


def publish_flag(e, base, idx_sgpr, shift=7):
    lbl = e.new_label('PF')
    e(f'''
    s_cmp_lg_u32 {sW}, 0
    s_cbranch_scc1 {lbl}
    s_lshl_b32 s57, {idx_sgpr}, {shift}
    s_add_u32 s57, s57, {base}
    v_mov_b32 v3, {sTAG}
    v_mov_b32 v4, 0
    s_mov_b64 exec, 1
    ''')
    e.raw(f'buffer_store_dword v3, v4, {srd(S_WS)}, s57 offen sc1')
    e.raw('s_nop 1')
    e('s_mov_b64 exec, -1')
    e.label(lbl)


def poll_loop(e, voff, nregs, scratch=None):
    lp = e.new_label('POLL')
    dn = e.new_label('POLLD')
    e('s_mov_b32 s57, 0')
    sc = voff + nregs if scratch is None else scratch
    e.label(lp)
    for k in range(nregs):
        e.raw(f'buffer_load_dword v{sc + k}, v{voff + k}, {srd(S_WS)}, 0 offen sc1')
    e.raw('s_waitcnt vmcnt(0)')
    e.raw(f'v_cmp_ne_u32 vcc, {sTAG}, v{sc}')
    for k in range(1, nregs):
        e.raw(f'v_cmp_ne_u32 s[58:59], {sTAG}, v{sc + k}')
        e.raw('s_nop 0')
        e.raw('s_or_b64 vcc, vcc, s[58:59]')
    e.raw('s_add_u32 s57, s57, 1')
    e.raw(f's_cmp_gt_u32 s57, {SPIN_MAX}')
    e.raw(f's_cbranch_scc1 {dn}')
    e.raw(f's_cbranch_vccnz {lp}')
    e.label(dn)


def poll_flags(e, voff, nregs=1):
    sk = e.new_label('POLLS')
    e(f'''
    s_cmp_lg_u32 {sW}, 0
    s_cbranch_scc1 {sk}
    ''')
    poll_loop(e, voff, nregs)
    e.label(sk)
    e('s_barrier')
```

```python
from common import *
from p0 import *
from emit import Ins

KB = 0
KS = 6144
VB = 36864
VS = 6208
OB = VB + 6 * VS + 64
NEG = -1.0e30

SB = 16
QF = 160
QM = 172
KF = 188
VF = 204
MK = 220
OA = 228
vK, vVA, vVB, vY = 244, 245, 246, 247
vM, vT0, vT1, vT2 = 248, 249, 250, 251
OUTA = 0


def p2_pre(e):
    e(f'''
    s_mul_i32 s60, {sJ}, 5
    s_lshr_b32 s60, s60, 1             ; m0
    s_and_b32 s61, {sJ}, 1
    s_lshl_b32 s61, s61, 1             ; o
    ''')
    e(f'''
    v_mov_b32 v8, 0x3f80
    v_mov_b32 v9, 0
    v_mov_b32 v10, 0
    v_mov_b32 v11, 0
    v_lshlrev_b32 v3, 4, v0
    v_add_u32 v3, {OB}, v3
    ds_write_b128 v3, v[8:11]
    v_and_b32 v4, 127, v0
    v_lshlrev_b32 v4, 4, v4
    v_add_u32 v4, {OB + 4096}, v4
    ds_write_b128 v4, v[8:11]
    ''')
    p2_lane_setup(e)
    from p3 import xtile_setup
    xtile_setup(e)
    e(f'''
    s_lshl_b32 s57, {sI}, 7
    s_lshl_b32 s58, {sW}, 5
    s_add_u32 s57, s57, s58
    s_lshl_b32 s57, s57, 4
    s_lshl_b32 s58, s60, 16
    s_add_u32 s57, s57, s58
    s_add_u32 s98, s57, {WS_QKV}
    v_lshrrev_b32 v3, 5, v1            ; h
    v_and_b32 v4, 31, v1               ; t
    v_lshlrev_b32 v5, 15, v3
    v_lshl_add_u32 v13, v4, 4, v5
    s_add_u32 s57, {sI}, {sW}
    s_cmp_ge_u32 s57, 2
    s_cselect_b32 s58, 0, 0xf0000000
    v_or_b32 v12, s58, v2
    s_add_u32 s99, s60, 40
    s_lshl_b32 s99, s99, 16             ; quad (40+m0) * 65536
    s_lshl_b32 s63, s57, 11             ; 128*(i+w)*16
    s_add_u32 s99, s99, s63
    s_add_u32 s99, s99, {WS_QKV - 4096}
    ''')
    e(f'''
    s_lshl_b32 s62, {sI}, 3
    s_lshl_b32 s63, {sW}, 1
    s_add_u32 s62, s62, s63
    s_mul_i32 s62, s62, 20480
    s_add_u32 s62, s62, {WS_OF}
    s_lshl_b32 s63, {sJ}, 10
    s_add_u32 s96, s62, s63
    s_lshr_b32 s63, {sJ}, 2
    s_add_u32 s63, s63, 16
    s_lshl_b32 s63, s63, 10
    s_add_u32 s97, s62, s63
    s_and_b32 s63, {sJ}, 3
    s_lshl_b32 s63, s63, 8
    s_add_u32 s97, s97, s63
    v_bfe_u32 v3, v1, 4, 1
    v_mul_u32_u24 v3, 20480, v3
    v_and_b32 v4, 15, v1
    v_lshl_add_u32 v3, v4, 4, v3
    v_lshrrev_b32 v4, 5, v1
    v_lshl_add_u32 v252, v4, 8, v3     ; main: + h*256
    v_mov_b32 v5, 0xf0000000
    v_cmp_eq_u32 vcc, 0, v4
    v_cndmask_b32 v253, v5, v3, vcc
    ''')
    e(f'''
    s_lshr_b32 s62, s60, 3             ; c_lo
    s_add_u32 s63, s60, 2
    s_lshr_b32 s63, s63, 3             ; c_hi
    v_and_b32 v3, 15, v1
    v_lshrrev_b32 v4, 2, v3
    v_and_b32 v5, 1, v3
    v_mov_b32 v6, s62
    v_mov_b32 v7, s63
    v_cmp_eq_u32 vcc, 1, v5
    v_cndmask_b32 v6, v6, v7, vcc
    v_bfe_u32 v5, v3, 1, 1
    v_mul_u32_u24 v5, 5, v5
    v_add_u32 v5, 5, v5                ; 5 or 10
    v_cmp_eq_u32 vcc, 3, v4
    v_cndmask_b32 v5, v5, 0, vcc
    v_cndmask_b32 v4, v4, 0, vcc
    v_add_u32 v6, v6, v5               ; tile
    v_sub_u32 v7, {sI}, v4
    v_max_i32 v7, 0, v7
    v_lshl_add_u32 v7, v7, 4, v6
    v_lshlrev_b32 v8, 7, v7
    v_add_u32 v8, {FL_QKV}, v8
    s_lshl_b32 s63, {sW}, 11
    ''')


def p2_loads(e):
    for f in range(3):
        e(f'buffer_load_dwordx4 {v4(QF + 4 * f)}, v13, {srd(S_WS)}, s98 offen sc1')
        if f < 2:
            e('s_add_u32 s98, s98, 65536')
    L3, LJ = e.new_label('KV3'), e.new_label('KVJ')
    e(f'''
    s_cmp_eq_u32 {sW}, 3
    s_cbranch_scc1 {L3}
    ''')
    for sec in range(2):
        for row in range(6):
            for hf in range(2):
                lds = (KB + row * KS if sec == 0 else VB + row * VS) + hf * 1024
                src = sec * 40 * 65536 + row * 32768 + hf * 1024
                e(f'''
                s_add_u32 m0, s63, {lds}
                s_add_u32 s57, s99, {src}
                buffer_load_dwordx4 v12, {srd(S_WS)}, s57 offen sc1 lds
                ''')
    e.force_wait(vm=12)
    e(f's_branch {LJ}')
    e.label(L3)
    e(f'v_lshlrev_b32 v4, 2, v1\n v_add_u32 v4, {FL_REL}, v4\n v_add_u32 v5, 256, v4\n v_add_u32 v6, 512, v4\n v_add_u32 v7, 768, v4')
    poll_loop(e, 4, 4)
    e.label(LJ)
    e.assume_settled(12)
    e.join_vm = e.vm_n
    from p3 import xtile_loads
    for x in xtile_loads():
        e(x)


def p2_lane_setup(e):
    e(f'''
    v_lshrrev_b32 v3, 5, v1
    v_and_b32 v4, 31, v1
    s_lshl_b32 s57, {sW}, 5
    v_mul_u32_u24 v5, {KS}, v3
    v_add_u32 v6, s57, v4
    v_lshl_add_u32 v{vK}, v6, 4, v5
    v_add_u32 v{vK}, {KB}, v{vK}
    v_lshlrev_b32 v5, 2, v3
    v_sub_u32 v{vY}, v4, v5            ; t_q - 4h
    ''')
    for r in range(16):
        c = (r & 3) + 8 * (r >> 2)
        e(f'v_cmp_le_i32 s[{64 + 2 * r}:{65 + 2 * r}], {c}, v{vY}')
    for d in range(8):
        e(f'''
        v_mov_b32 v8, 0xffff
        v_mov_b32 v9, 0xffff0000
        v_cndmask_b32 v8, 0, v8, s[{64 + 4 * d}:{65 + 4 * d}]
        v_cndmask_b32 v9, 0, v9, s[{66 + 4 * d}:{67 + 4 * d}]
        v_or_b32 v{MK + d}, v8, v9
        ''')
    e(f'''
    v_bfe_u32 v5, v1, 2, 2             ; r
    v_lshl_add_u32 v5, v3, 2, v5       ; 4h + r
    v_add_u32 v5, s57, v5              ; + 32w
    v_lshlrev_b32 v5, 4, v5            ; key*16
    v_bfe_u32 v6, v1, 4, 1
    v_and_b32 v7, 3, v1
    v_lshl_add_u32 v6, v6, 2, v7       ; pp
    ''')
    for X, reg in ((0, vVA), (1, vVB)):
        e(f'''
        v_add_u32 v7, s61, v6
        v_add_u32 v7, {5 * X}, v7       ; p
        v_lshrrev_b32 v8, 2, v7
        v_lshlrev_b32 v8, 1, v8
        v_and_b32 v9, 1, v7
        v_add_u32 v8, v8, v9            ; row
        v_mul_u32_u24 v8, {VS}, v8
        v_bfe_u32 v9, v7, 1, 1
        v_lshl_add_u32 v8, v9, 3, v8
        v_add_u32 v8, {VB}, v8
        v_bfe_u32 v9, v6, 1, 1
        v_lshlrev_b32 v9, 3, v9
        v_add_u32 v9, {OB}, v9
        v_cmp_le_u32 vcc, 5, v6
        v_cndmask_b32 v8, v8, v9, vcc
        v_add_u32 v{reg}, v8, v5
        ''')


def p2_qmask(e):
    e('v_lshrrev_b32 v3, 5, v1')
    e(f'v_subrev_u32 v5, s61, v3')
    for idx, (f, X) in enumerate(((0, 0), (1, 0), (1, 1), (2, 1))):
        for hi in range(2):
            e(f'''
            v_add_u32 v6, {(4 * f + 2 * hi - 5 * X) & 0xffffffff}, v5
            v_cmp_gt_u32 vcc, 5, v6
            v_cndmask_b32 v{QM + 4 * idx + 2 * hi}, 0, v{QF + 4 * f + 2 * hi}, vcc
            v_cndmask_b32 v{QM + 4 * idx + 2 * hi + 1}, 0, v{QF + 4 * f + 2 * hi + 1}, vcc
            ''')


def pad_for(e, text):
    n = e._need_nops(Ins(text))
    if n > 0:
        e.raw(f's_nop {n - 1}')


def head(e, X, groups, before_pv=None):
    vV = vVA if X == 0 else vVB
    Qa, Qb = QM + 8 * X, QM + 8 * X + 4

    def kreads(jb):
        b = KF + 8 * (jb & 1)
        return [f'ds_read_b128 {v4(b)}, v{vK} offset:{2 * X * KS + jb * 512}',
                f'ds_read_b128 {v4(b + 4)}, v{vK} offset:{2 * (X + 1) * KS + jb * 512}']

    def fixup(jb):
        lbl, back = e.new_label('FX'), e.new_label('FXB')
        pad_for(e, f'v_mov_b32 v{SB + 16 * jb + 15}, 0')
        e(f's_cmp_gt_i32 s58, {jb}\n s_cbranch_scc1 {lbl}')
        e.label(back)
        e.cold.append(lbl + ':')
        for r in range(16):
            e.cold.append(f'    v_mov_b32 v{SB + 16 * jb + r}, {hexf(NEG)}')
        e.cold.append(f'    s_branch {back}')

    state = {'n': 0}

    def maxops(base):
        out = []
        regs = list(range(base, base + 16))
        if state['n'] == 0:
            out.append(f'v_max3_f32 v{vM}, v{regs[0]}, v{regs[1]}, v{regs[2]}')
            out.append(f'v_max3_f32 v{vT0}, v{regs[3]}, v{regs[4]}, v{regs[5]}')
            rest = regs[6:]
        else:
            rest = regs
        for k in range(0, len(rest), 2):
            d = vM if (k // 2) % 2 == 0 else vT0
            out.append(f'v_max3_f32 v{d}, v{rest[k]}, v{rest[k + 1]}, v{d}')
        state['n'] += 1
        return out
    e(f'''
    s_lshl_b32 s57, {sI}, 2
    s_add_u32 s57, s57, {sW}           ; qb
    s_sub_i32 s58, 8, s57
    ''')
    qorder = [0, 8, 1, 2, 3, 4, 5, 6, 7]
    kb = {jb: n % 4 for n, jb in enumerate(qorder)}

    def kr(jb):
        b = KF + 8 * kb[jb]
        return [f'ds_read_b128 {v4(b)}, v{vK} offset:{2 * X * KS + jb * 512}',
                f'ds_read_b128 {v4(b + 4)}, v{vK} offset:{2 * (X + 1) * KS + jb * 512}']
    for n in range(3):
        for x in kr(qorder[n]):
            e(x)
    M = SB + 128
    for n, jb in enumerate(qorder):
        b = KF + 8 * kb[jb]
        S = vr(SB + 16 * jb, 16)
        work = []
        if n >= 2:
            p = qorder[n - 2]
            if p == 0:
                fixup(0)
            elif p == 8:
                work = [f'v_cndmask_b32 v{M + r}, v{SB + r}, v{M + r}, s[{64 + 2 * r}:{65 + 2 * r}]' for r in range(16)] + maxops(M)
            else:
                fixup(p)
                work = maxops(SB + 16 * p)
        rd = kr(qorder[n + 3]) if n + 3 < 9 else []
        h = (len(work) + 1) // 2
        e(f'v_mfma_f32_32x32x16_bf16 {S}, {v4(b)}, {v4(Qa)}, 0')
        for x in work[:h]:
            e(x)
        e(f'v_mfma_f32_32x32x16_bf16 {S}, {v4(b + 4)}, {v4(Qb)}, {S}')
        for x in rd + work[h:]:
            e(x)
    for p in qorder[-2:]:
        fixup(p)
        for x in maxops(SB + 16 * p):
            e(x)
    e(f'v_max_f32 v{vM}, v{vM}, v{vT0}')
    e(f'v_mov_b32 v{vT0}, v{vM}')
    e(f'v_permlane32_swap_b32 v{vM}, v{vT0}')
    e(f'v_max_f32 v{vM}, v{vM}, v{vT0}')
    e.ts(36 + 2 * X)
    if before_pv is not None:
        before_pv()
    e.ts(37 + 2 * X)

    def probs(base):
        sub = [f'v_pk_add_f32 {v2(base + 2 * k)}, {v2(base + 2 * k)}, {v2(vM)} op_sel_hi:[1,0] neg_lo:[0,1] neg_hi:[0,1]' for k in range(8)]
        ex = [f'v_exp_f32 v{base + k}, v{base + k}' for k in range(16)]
        cv = [f'v_cvt_pk_bf16_f32 v{base + k}, v{base + 2 * k}, v{base + 2 * k + 1}' for k in range(8)]
        out = sub + ['M0'] + ex[0:4] + ['G', cv[0]] + ex[4:6] + [cv[1], 'R'] + ex[6:8] + [cv[2], 'M1'] + ex[8:12] + \
            ['R', cv[3], 'G'] + ex[12:14] + [cv[4], 'R', 'G'] + ex[14:16] + [cv[5], 'R', 'G', cv[6], 'G', cv[7]]
        return out
    order = [1, 2, 3, 4, 5, 6, 7, 8, 0]
    bufidx = {jb: n & 1 for n, jb in enumerate(order)}
    O = vr(OA, 16)

    def vreads(jb):
        b = VF + 8 * bufidx[jb]
        return [f'ds_read_b64_tr_b16 {v2(b + 4 * sg + 2 * ee)}, v{vV} offset:{jb * 512 + sg * 256 + ee * 128}'
                for sg in range(2) for ee in range(2)]

    def pv(jb, first):
        b = VF + 8 * bufidx[jb]
        base = SB + 16 * jb
        return [f'v_mfma_f32_32x32x16_bf16 {O}, {v4(b + 4 * sg)}, {v4(base + 4 * sg)}, {"0" if (first and sg == 0) else O}' for sg in range(2)]
    for x in vreads(order[0]):
        e(x)
    prev = None
    for n, jb in enumerate(order):
        base = SB + 16 * jb
        if jb == 0:
            work = []
        else:
            work = probs(base)
            if jb == 8:
                work += [f'v_bfi_b32 v{SB + d}, v{MK + d}, 0, v{base + d}' for d in range(8)]
                work += [f'v_and_b32 v{base + d}, v{MK + d}, v{base + d}' for d in range(8)]
        ins = pv(prev, prev == order[0]) if prev is not None else []
        rd = vreads(order[n + 1]) if n + 1 < len(order) else []
        import os
        npf = int(os.environ.get('NPF', 5))
        if work:
            ng = 0
            m1_done = False
            held = []
            for x in work:
                if x == 'M0':
                    if ins:
                        e(ins[0])
                elif x == 'M1':
                    if ins:
                        e(ins[1])
                    m1_done = True
                    for y in held:
                        e(y)
                    held = []
                elif x == 'R':
                    if rd:
                        y = rd.pop(0)
                        if m1_done:
                            e(y)
                        else:
                            held.append(y)
                elif x == 'G':
                    if groups and ng < npf:
                        for y in groups.pop(0):
                            e(y)
                        ng += 1
                else:
                    e(x)
            for y in rd:
                e(y)
        else:
            for x in ins + rd:
                e(x)
        prev = jb
    for x in pv(prev, False):
        e(x)
    e(f'v_mov_b32 v{vT0}, v{OA + 8}')
    e(f'v_mov_b32 v{vT1}, v{OA + 8}')
    e(f'v_permlane32_swap_b32 v{vT0}, v{vT1}')
    e(f'v_rcp_f32 v{vT1}, v{vT1}')
    for k in range(6):
        e(f'v_pk_mul_f32 {v2(OA + 2 * k)}, {v2(OA + 2 * k)}, {v2(vT1)} op_sel_hi:[1,0]')


def p2_all(e):
    from p1 import late_store
    p2_pre(e)
    poll_flags(e, 8, 1)
    e.ts(11)
    late_store(e)
    p2_loads(e)
    p2_qmask(e)
    e.force_wait(lg=0)
    e('s_barrier')
    publish_flag(e, FL_LATE, sB, shift=2)
    e.ts(12)
    from p3 import p3_prefetch
    groups = p3_prefetch(e)

    def v_ready():
        e.force_wait(vm=min(63, e.vm_n - e.join_vm))
        e('s_barrier')

    def late_ready():
        sk = e.new_label('LP')
        e(f'''s_cmp_lg_u32 {sW}, 3
        s_cbranch_scc1 {sk}
        v_lshlrev_b32 v8, 2, v1
        v_add_u32 v8, {FL_LATE}, v8
        v_add_u32 v9, 256, v8
        v_add_u32 v10, 128, v1
        v_min_u32 v10, 159, v10
        v_lshlrev_b32 v10, 2, v10
        v_add_u32 v10, {FL_LATE}, v10''')
        poll_loop(e, 8, 3, scratch=249)
        e.label(sk)
        e('s_barrier')
    for X in range(2):
        head(e, X, groups, v_ready if X == 0 else late_ready)
        e.ts(40 + X)
        for k in range(4):
            e(f'v_cvt_pk_bf16_f32 v{8 + k}, v{OA + 2 * k}, v{OA + 2 * k + 1}')
        e(f'v_cvt_pk_bf16_f32 v{12 + 2 * X}, v{OA + 8}, v{OA + 9}')
        e(f'v_cvt_pk_bf16_f32 v{13 + 2 * X}, v{OA + 10}, v{OA + 11}')
        e(f'buffer_store_dwordx4 v[8:11], v252, {srd(S_WS)}, s96 offen offset:{512 * X} sc1')
    e(f'buffer_store_dwordx4 v[12:15], v253, {srd(S_WS)}, s97 offen sc1')
    e.ts(13)
    e.force_wait(vm=0)
    e('s_barrier')
    e(f's_lshl_b32 s58, {sI}, 4\n s_add_u32 s58, s58, {sJ}')
    publish_flag(e, FL_O, 's58')
    for g in groups:
        for x in g:
            e(x)
```

```python
from common import *
from p0 import *
from p1 import sum4, bf16_round4

M2 = LDS_MISC
M2_SB, M2_G2, M2_GA, M2_GB = M2, M2 + 2560, M2 + 5120, M2 + 5440
VEC = M2 + 5760
UVT = VEC + 3840
RSB = UVT + 1536
assert RSB + 2048 <= LDS_SIZE
RED3 = 122880
RED5 = 0
X1P = 230
A_X, A_M2 = 200, 210


def ksplit_setup(e):
    e(f'''
    s_and_b32 s60, {sJ}, 1
    s_lshr_b32 s61, {sJ}, 1
    s_lshl_b32 s62, {sI}, 3
    s_lshl_b32 s63, s60, 2
    s_add_u32 s62, s62, s63
    ''')


def touch_list(ws_base, total_lines, vaddr, sreg, areg):
    per_wave = total_lines // 128
    out = []
    for k in range((per_wave + 63) // 64):
        n = min(64, per_wave - 64 * k)
        g = [f's_lshr_b32 {sreg}, {sB}, 3', f's_lshl_b32 {sreg}, {sreg}, 2', f's_add_u32 {sreg}, {sreg}, {sW}',
             f's_mul_i32 {sreg}, {sreg}, {per_wave * 128}', f's_add_u32 {sreg}, {sreg}, {ws_base + 64 * k * 128}']
        if n < 64:
            assert n > 32
            g += [f's_mov_b32 exec_hi, {hex((1 << (n - 32)) - 1)}', f'buffer_load_dword {areg}, {vaddr}, {srd(S_WS)}, {sreg} offen sc1', 's_mov_b32 exec_hi, -1']
        else:
            g += [f'buffer_load_dword {areg}, {vaddr}, {srd(S_WS)}, {sreg} offen sc1']
        out.append(g)
    return out


def p3_prefetch(e):
    ksplit_setup(e)
    e(f'''
    s_mul_i32 s98, s61, 20
    s_and_b32 s58, {sW}, 1
    s_mul_i32 s58, s58, 10
    s_add_u32 s98, s98, s58
    s_mul_i32 s98, s98, 5120
    s_add_u32 s98, s98, {WS_WOF}
    v_lshlrev_b32 v4, 4, v0
    v_add_u32 v5, {(1920 + 1024) * 4}, v4          ; tid < 64
    s_mul_i32 s58, s61, 320
    s_add_u32 s59, s58, {1280 * 4 - 64 * 16}
    v_add_u32 v6, s59, v4
    s_add_u32 s59, s58, {3200 * 4 - 84 * 16}
    v_add_u32 v8, s59, v4
    v_cmp_gt_u32 vcc, 84, v0
    v_cndmask_b32 v6, v8, v6, vcc
    v_cmp_gt_u32 vcc, 64, v0
    v_cndmask_b32 v5, v6, v5, vcc
    v_add_u32 v4, {1920 * 4}, v4
    s_mul_i32 s99, {sJ}, 122880
    s_mul_i32 s60, {sW}, 10240
    s_add_u32 s60, s60, 81920
    s_add_u32 s99, s99, s60
    s_add_u32 s99, s99, {WS_W1F}
    ''')
    e(f'''
    v_min_u32 v8, 95, v0
    v_lshlrev_b32 v6, 1, v8
    ''')
    out = [f's_mul_i32 s57, {sJ}, 192', f'buffer_load_ushort a242, v6, {srd(S_B1)}, s57 offen']
    for k in range(50):
        if k and k % 4 == 0:
            out.append('s_add_u32 s98, s98, 4096')
        out.append(f'buffer_load_dwordx4 {a4(4 * k)}, v2, {srd(S_WS)}, s98 offen offset:{(k % 4) * 1024} sc1')
    for k in range(10):
        out.append(f's_add_u32 m0, s60, {k * 1024}')
        out.append(f's_add_u32 s59, s99, {k * 1024}')
        out.append(f'buffer_load_dwordx4 v2, {srd(S_WS)}, s59 offen sc1 lds')
    for p in range(4):
        out.append(f's_mov_b32 s57, {WS_MODP + p * 15360}')
        out.append(f'buffer_load_dwordx4 {a4(A_M2 + 4 * p)}, v4, {srd(S_WS)}, s57 offen sc1')
        out.append(f's_mov_b32 s57, {WS_MODP + p * 15360}')
        out.append(f'buffer_load_dwordx4 {a4(A_M2 + 16 + 4 * p)}, v5, {srd(S_WS)}, s57 offen sc1')
    return groups_of(out)


def xtile_setup(e):
    e(f'''
    s_and_b32 s57, {sJ}, 1
    s_lshl_b32 s57, s57, 2
    s_lshl_b32 s58, {sI}, 3
    s_add_u32 s57, s57, s58
    s_add_u32 s57, s57, {sW}
    s_lshl_b32 s57, s57, 4
    s_mul_i32 s7, s57, 1280
    s_lshr_b32 s58, {sJ}, 1
    s_mul_i32 s58, s58, 160
    s_add_u32 s7, s7, s58
    v_and_b32 v4, 15, v1
    v_lshrrev_b32 v5, 4, v1
    v_mul_u32_u24 v15, 1280, v4
    v_lshl_add_u32 v15, v5, 3, v15
    ''')


def xtile_loads():
    return [f'buffer_load_dwordx2 {ar(A_X + 2 * a, 2)}, v15, {srd(S_X)}, s7 offen offset:{32 * a}' for a in range(5)]


def slot_pos(e, m, out, t):
    e(f'''
    v_mul_u32_u24 v{t}, 3277, v{m}
    v_lshrrev_b32 v{t}, 16, v{t}             ; cs = m/20
    v_mul_u32_u24 v{t + 1}, 20, v{t}
    v_sub_u32 v{t + 1}, v{m}, v{t + 1}       ; mm
    v_mul_u32_u24 v{t}, 80, v{t}             ; 16*5*cs
    v_lshrrev_b32 v{t + 2}, 3, v{t + 1}      ; grp
    v_lshlrev_b32 v{t + 2}, 5, v{t + 2}      ; 16*2*grp
    v_bfe_u32 v{t + 3}, v{t + 1}, 1, 1       ; gidx>>1
    v_lshl_add_u32 v{t + 2}, v{t + 3}, 4, v{t + 2}
    v_and_b32 v{t + 3}, 1, v{t + 1}          ; h
    v_lshl_add_u32 v{t + 2}, v{t + 3}, 3, v{t + 2}
    v_bfe_u32 v{t + 3}, v{t + 1}, 2, 1       ; jjhi
    v_lshl_add_u32 v{t + 2}, v{t + 3}, 2, v{t + 2}
    v_bfe_u32 v{t + 3}, v{t + 1}, 1, 1       ; (mm-16)>>1
    v_lshlrev_b32 v{out}, 3, v{t + 3}
    v_and_b32 v{t + 3}, 1, v{t + 1}
    v_lshl_add_u32 v{out}, v{t + 3}, 2, v{out}
    v_add_u32 v{out}, 64, v{out}
    v_cmp_gt_u32 vcc, 16, v{t + 1}
    v_cndmask_b32 v{out}, v{out}, v{t + 2}, vcc
    v_add_u32 v{out}, v{out}, v{t}
    v_lshlrev_b32 v{out}, 1, v{out}
    ''')
    for m_ in range(160):
        assert (m_ * 3277) >> 16 == m_ // 20


def window_c_pre(e):
    e(f'''
    v_subrev_u32 v3, 160, v0
    v_cmp_gt_u32 vcc, 160, v0
    v_cndmask_b32 v3, v3, v0, vcc
    v_mov_b32 v4, {VEC}
    v_mov_b32 v5, {VEC + 1280}
    v_cndmask_b32 v74, v4, v5, vcc
    ''')
    slot_pos(e, 3, 72, 6)
    e('v_add_u32 v72, v72, v74')
    e('v_add_u32 v3, 96, v0\n v_min_u32 v3, 159, v3')
    slot_pos(e, 3, 73, 6)
    e(f'v_add_u32 v73, {VEC}, v73')


def window_c(e):
    window_c_pre(e)
    R0, R1 = 16, 32
    for k in range(16):
        e(f'v_accvgpr_read_b32 v{R0 + k}, a{A_M2 + k}')
    for k in range(16):
        e(f'v_accvgpr_read_b32 v{R1 + k}, a{A_M2 + 16 + k}')
    e(f'''
    v_accvgpr_read_b32 v70, a242
    v_cmp_le_u32 vcc, 160, v0
    v_cndmask_b32 v5, 0, 1.0, vcc
    v_cmp_gt_u32 vcc, 64, v0
    v_cndmask_b32 v6, 0, 1.0, vcc
    ''')
    for R, one in ((R0, 'v5'), (R1, 'v6')):
        sum4(e, R)
        bf16_round4(e, R)
        for k in range(4):
            e(f'v_add_f32 v{R + k}, {one}, v{R + k}')
        bf16_round4(e, R)
    e(f'''
    v_lshlrev_b32 v3, 4, v0
    v_add_u32 v3, {M2}, v3
    v_add_u32 v4, 4096, v3
    ds_write_b128 v3, {v4(R0)}
    ds_write_b64 v72, {v2(R0 + 4)}
    v_mov_b32 v8, 0x3f803f80
    v_mov_b32 v9, 0x3f803f80
    v_min_u32 v10, 159, v0
    v_lshlrev_b32 v10, 3, v10
    v_add_u32 v10, {VEC + 2560}, v10
    ds_write_b64 v10, v[8:9]
    v_lshlrev_b32 v70, 16, v70
    v_min_u32 v10, 95, v0
    v_lshlrev_b32 v10, 2, v10
    v_add_u32 v10, {UVT + 3 * 384}, v10
    ds_write_b32 v10, v70
    v_cmp_gt_u32 vcc, 104, v0
    s_and_saveexec_b64 s[58:59], vcc
    ''')
    lbl, l2 = e.new_label('M2S'), e.new_label('M2T')
    e(f's_cbranch_execz {lbl}')
    e.raw(f'ds_write_b128 v4, {v4(R1)}')
    e.raw('v_cmp_gt_u32 vcc, 64, v0')
    e.raw('s_nop 1')
    e.raw('s_and_b64 exec, exec, vcc')
    e.raw(f's_cbranch_execz {lbl}')
    e.raw(f'ds_write_b64 v73, {v2(R1 + 4)}')
    e.label(lbl)
    e('s_mov_b64 exec, s[58:59]')
    e.force_wait(lg=0)
    e('s_barrier')


def lane_vec_reads(e, dst, vaddr, off):
    for a in range(5):
        e(f'ds_read_b128 {v4(dst + 4 * a)}, {vaddr} offset:{off + 64 * a}')


def poll_group(e, base):
    e(f'''
    v_and_b32 v8, 15, v1
    s_lshl_b32 s57, {sI}, 4
    v_add_u32 v8, s57, v8
    v_lshlrev_b32 v8, 7, v8
    v_add_u32 v8, {base}, v8
    ''')
    poll_flags(e, 8, 1)


def p3(e):
    window_c(e)
    ksplit_setup(e)
    BF, ACC = 80, 160
    e(f'''
    s_and_b32 s57, {sW}, 1
    s_mul_i32 s58, s57, 10
    s_add_u32 s59, s62, {sW}
    s_xor_b32 s63, {sW}, 1
    s_add_u32 s63, s63, s62
    s_mul_i32 s59, s59, 20
    s_add_u32 s59, s59, s58
    s_lshl_b32 s59, s59, 10
    s_add_u32 s96, s59, {WS_OF}
    s_mul_i32 s63, s63, 20
    s_add_u32 s63, s63, s58
    s_lshl_b32 s63, s63, 10
    s_add_u32 s97, s63, {WS_OF}
    ''')
    e(f'''
    v_lshrrev_b32 v4, 4, v1            ; g
    v_lshlrev_b32 v6, 4, v4
    v_add_u32 v7, {M2}, v6             ; slices: 4g*4
    s_mul_i32 s57, s61, 320
    v_add_u32 v6, s57, v7
    s_xor_b32 s57, {sW}, 1
    s_mul_i32 s57, s57, 5120
    s_add_u32 s57, s57, {RED3}
    v_add_u32 v12, s57, v2             ; reduction write address
    s_mul_i32 s57, {sW}, 5120
    s_add_u32 s57, s57, {RED3}
    v_add_u32 v13, s57, v2             ; reduction read address
    ''')
    GA, G2, SBv = 16, 36, 56
    lane_vec_reads(e, GA, 'v7', M2_GA - M2)
    lane_vec_reads(e, G2, 'v6', M2_G2 - M2)
    lane_vec_reads(e, SBv, 'v6', M2_SB - M2)
    X = 204
    for k in range(10):
        e(f'v_accvgpr_read_b32 v{224 + (k & 1)}, a{A_X + k}')
        e(f'v_lshlrev_b32 v{X + 2 * k}, 16, v{224 + (k & 1)}')
        e(f'v_and_b32 v{X + 2 * k + 1}, 0xffff0000, v{224 + (k & 1)}')
    e.ts(14)
    poll_group(e, FL_O)
    e.ts(15)

    def oload(tau, s):
        sr = 's97' if tau == 1 else 's96'
        out = []
        if s and s % 4 == 0:
            out.append(f's_add_u32 {sr}, {sr}, 4096')
        out.append(f'buffer_load_dwordx4 {v4(BF + (10 * tau + s) * 4)}, v2, {srd(S_WS)}, {sr} offen offset:{(s % 4) * 1024} sc1')
        return out
    for s in range(10):
        for x in oload(1, s):
            e(x)
    e(f'''
    s_mul_i32 s98, {sJ}, 122880
    s_mul_i32 s99, {sW}, 20480
    s_add_u32 s98, s98, s99
    s_add_u32 s98, s98, {WS_W1F}
    v_lshlrev_b32 v14, 7, v1
    ''')
    w1 = [[f's_add_u32 m0, s99, {k * 1024}', f's_add_u32 s59, s98, {k * 1024}',
           f'buffer_load_dwordx4 v2, {srd(S_WS)}, s59 offen sc1 lds'] for k in range(20)]
    t2 = touch_list(WS_W2F, 15360, 'v14', 's57', 'a246')
    for tau in (1, 0):
        for s in range(10):
            for a in range(5):
                r = v4(ACC + (5 * tau + a) * 4)
                c = '0' if s == 0 else r
                e(f'v_mfma_f32_16x16x32_bf16 {r}, {a4((5 * s + a) * 4)}, {v4(BF + (10 * tau + s) * 4)}, {c}')
            if tau == 1:
                for x in oload(0, s):
                    e(x)
                for x in w1.pop(0):
                    e(x)
            else:
                for x in w1.pop(0):
                    e(x)
            if s == 0 or s == 9:
                e.ts(48 + 2 * (1 - tau) + (1 if s == 9 else 0))
            if tau == 0 and s == 1:
                for a in range(5):
                    e(f'ds_write_b128 v12, {v4(ACC + (5 + a) * 4)} offset:{a * 1024}')
    e.ts(16)
    e.wait(lg=0)
    e('s_barrier')
    T = ACC + 20
    for a in range(5):
        e(f'ds_read_b128 {v4(T + 4 * a)}, v13 offset:{a * 1024}')
    for k in range(10):
        e(f'v_pk_add_f32 {v2(ACC + 2 * k)}, {v2(ACC + 2 * k)}, {v2(T + 2 * k)}')
    e.ts(17)
    Y, YP = 80, 100
    for k in range(10):
        e(f'v_pk_fma_f32 {v2(X + 2 * k)}, {v2(GA + 2 * k)}, {v2(ACC + 2 * k)}, {v2(X + 2 * k)}')
    for k in range(10):
        e(f'v_pk_mul_f32 {v2(Y + 2 * k)}, {v2(X + 2 * k)}, {v2(G2 + 2 * k)}')
    for k in range(10):
        e(f'v_cvt_pk_bf16_f32 v{YP + k}, v{Y + 2 * k}, v{Y + 2 * k + 1}')
    e(f'''
    s_lshr_b32 s57, s62, 1
    s_lshr_b32 s58, {sW}, 1
    s_add_u32 s57, s57, s58            ; tb32
    s_mul_i32 s96, s57, 40
    s_mul_i32 s58, s61, 5
    s_add_u32 s96, s96, s58
    s_lshl_b32 s96, s96, 10
    s_and_b32 s58, {sW}, 1
    s_lshl_b32 s58, s58, 8
    s_add_u32 s96, s96, s58
    s_add_u32 s96, s96, {WS_X1G}
    s_lshl_b32 s97, s57, 3
    s_add_u32 s97, s97, s61
    s_lshl_b32 s97, s97, 10
    s_lshl_b32 s58, s58, 1
    s_add_u32 s97, s97, s58
    s_add_u32 s97, s97, {WS_STATS}
    v_and_b32 v3, 15, v1               ; t16
    v_lshrrev_b32 v5, 1, v4            ; g>>1
    v_and_b32 v7, 1, v4                ; g&1
    v_lshlrev_b32 v8, 10, v5
    v_lshl_add_u32 v8, v7, 9, v8
    v_lshl_add_u32 v8, v3, 4, v8
    v_lshlrev_b32 v9, 9, v5
    v_lshl_add_u32 v9, v3, 4, v9
    v_lshl_add_u32 v9, v7, 3, v9
    buffer_store_dwordx4 {v4(YP)}, v8, {srd(S_WS)}, s96 offen sc1
    buffer_store_dwordx4 {v4(YP + 4)}, v8, {srd(S_WS)}, s96 offen offset:2048 sc1
    s_add_u32 s96, s96, 4096
    buffer_store_dwordx2 {v2(YP + 8)}, v9, {srd(S_WS)}, s96 offen sc1
    ''')
    ST = 112
    defs = [('add', X, None), ('fma', X, X), ('add', Y, None), ('fma', Y, Y), ('fma', Y, G2), ('fma', Y, SBv)]
    for k in range(10):
        for n, (op, A, B) in enumerate(defs):
            r = ST + 2 * n
            if op == 'add':
                if k == 0:
                    e(f'v_pk_add_f32 {v2(r)}, {v2(A)}, {v2(A + 2)}')
                elif k >= 2:
                    e(f'v_pk_add_f32 {v2(r)}, {v2(r)}, {v2(A + 2 * k)}')
            else:
                if k == 0:
                    e(f'v_pk_mul_f32 {v2(r)}, {v2(A)}, {v2(B)}')
                else:
                    e(f'v_pk_fma_f32 {v2(r)}, {v2(A + 2 * k)}, {v2(B + 2 * k)}, {v2(r)}')
    for n in range(6):
        e(f'v_add_f32 v{ST + 2 * n}, v{ST + 2 * n}, v{ST + 2 * n + 1}')
    for swp in ('v_permlane16_swap_b32', 'v_permlane32_swap_b32'):
        for n in range(6):
            e(f'v_mov_b32 v{ST + 2 * n + 1}, v{ST + 2 * n}')
        for n in range(6):
            e(f'{swp} v{ST + 2 * n}, v{ST + 2 * n + 1}')
        for n in range(6):
            e(f'v_add_f32 v{ST + 2 * n}, v{ST + 2 * n}, v{ST + 2 * n + 1}')
    e(f'''
    v_cmp_eq_u32 vcc, 0, v4
    v_lshlrev_b32 v10, 5, v3
    v_lshl_add_u32 v10, v4, 4, v10
    v_cndmask_b32 v12, v{ST + 8}, v{ST}, vcc
    v_cndmask_b32 v13, v{ST + 10}, v{ST + 2}, vcc
    v_cndmask_b32 v14, 0, v{ST + 4}, vcc
    v_cndmask_b32 v15, 0, v{ST + 6}, vcc
    v_mov_b32 v11, 0xf0000000
    v_cmp_gt_u32 vcc, 2, v4
    v_cndmask_b32 v10, v11, v10, vcc
    buffer_store_dwordx4 v[12:15], v10, {srd(S_WS)}, s97 offen sc1
    ''')
    for k in range(10):
        e(f'v_cvt_pk_bf16_f32 v{X1P + k}, v{X + 2 * k}, v{X + 2 * k + 1}')
    e.settle()
    e('s_barrier')
    e(f's_lshl_b32 s62, {sI}, 4\n s_add_u32 s62, s62, {sJ}')
    publish_flag(e, FL_X1, 's62')


def wave_allsum(e, r, t):
    dpp_rowsum(e, r)
    for swp in ('v_permlane16_swap_b32', 'v_permlane32_swap_b32'):
        e(f'v_mov_b32 v{t}, v{r}')
        e(f'{swp} v{r}, v{t}')
        e(f'v_add_f32 v{r}, v{r}, v{t}')


def window_d(e, C):
    e(f'''
    v_mul_u32_u24 v6, 40, v1
    v_add_u32 v6, {M2}, v6
    ''')
    G, S_, r0 = 84, 94, 104
    for k in range(5):
        e(f'ds_read_b64 {v2(G + 2 * k)}, v6 offset:{M2_G2 - M2 + 8 * k}')
        e(f'ds_read_b64 {v2(S_ + 2 * k)}, v6 offset:{M2_SB - M2 + 8 * k}')
    defs = [('add', G, None), ('add', S_, None), ('mul', G, G), ('mul', G, S_), ('mul', S_, S_)]
    for n, (op, A, B) in enumerate(defs):
        r = r0 + 2 * n
        for k in range(5):
            if op == 'add':
                if k == 0:
                    e(f'v_pk_add_f32 {v2(r)}, {v2(A)}, {v2(A + 2)}')
                elif k >= 2:
                    e(f'v_pk_add_f32 {v2(r)}, {v2(r)}, {v2(A + 2 * k)}')
            else:
                if k == 0:
                    e(f'v_pk_mul_f32 {v2(r)}, {v2(A)}, {v2(B)}')
                else:
                    e(f'v_pk_fma_f32 {v2(r)}, {v2(A + 2 * k)}, {v2(B + 2 * k)}, {v2(r)}')
    for n in range(5):
        e(f'v_add_f32 v{C + n}, v{r0 + 2 * n}, v{r0 + 2 * n + 1}')
    for nn in (8, 4, 2, 1):
        for n in range(5):
            e(f'v_add_f32_dpp v{C + n}, v{C + n}, v{C + n} row_ror:{nn} row_mask:0xf bank_mask:0xf')
    for swp in ('v_permlane16_swap_b32', 'v_permlane32_swap_b32'):
        for n in range(5):
            e(f'v_mov_b32 v{r0 + n}, v{C + n}')
        for n in range(5):
            e(f'{swp} v{C + n}, v{r0 + n}')
        for n in range(5):
            e(f'v_add_f32 v{C + n}, v{C + n}, v{r0 + n}')
    for n in range(5):
        e(f'v_mul_f32 v{C + n}, {hexf(1.0 / 640)}, v{C + n}')


def w2_setup(e):
    e(f'''
    s_lshr_b32 s61, {sJ}, 1
    s_mul_i32 s57, s61, 48
    s_mul_i32 s58, {sW}, 12
    s_add_u32 s57, s57, s58
    s_mul_i32 s57, s57, 5120
    s_add_u32 s95, s57, {WS_W2F}
    ''')


def w2loads(k0, k1):
    out = []
    for k in range(k0, k1):
        if k and k % 4 == 0:
            out.append('s_add_u32 s95, s95, 4096')
        out.append(f'buffer_load_dwordx4 {a4(4 * k)}, v2, {srd(S_WS)}, s95 offen offset:{(k % 4) * 1024} sc1')
    return out


def groups_of(lst):
    groups, cur = [], []
    for x in lst:
        cur.append(x)
        if x.startswith('buffer'):
            groups.append(cur)
            cur = []
    if cur:
        groups.append(cur)
    return groups


def p4(e):
    C = 168
    w2_setup(e)
    window_d(e, C)
    e.ts(19)
    SR = 96

    def xreg(s):
        return v4(16 + 4 * s) if s < 16 else a4(160 + 4 * (s - 16))
    e(f'''
    s_lshl_b32 s57, {sI}, 2
    s_add_u32 s57, s57, {sW}           ; tb32
    s_mul_i32 s98, s57, 40960
    s_add_u32 s98, s98, {WS_X1G}
    s_lshl_b32 s99, s57, 13
    s_add_u32 s99, s99, {WS_STATS}
    ''')

    def xload(s):
        out = []
        if s and s % 4 == 0:
            out.append('s_add_u32 s98, s98, 4096')
        out.append(f'buffer_load_dwordx4 {xreg(s)}, v2, {srd(S_WS)}, s98 offen offset:{(s % 4) * 1024} sc1')
        return out

    def sload(cs):
        out = []
        if cs == 4:
            out.append('s_add_u32 s99, s99, 4096')
        out.append(f'buffer_load_dwordx4 {v4(SR + 4 * cs)}, v2, {srd(S_WS)}, s99 offen offset:{(cs % 4) * 1024} sc1')
        return out
    NUP = 12
    RSC = 152
    rs = []
    for cs in range(1, 8):
        for h in range(2):
            rs.append(f'v_pk_add_f32 {v2(SR + 2 * h)}, {v2(SR + 2 * h)}, {v2(SR + 4 * cs + 2 * h)}')
    T = SR + 8
    for k in range(4):
        rs.append(f'v_mov_b32_dpp v{T + k}, v{SR + k} quad_perm:[1,0,3,2] row_mask:0xf bank_mask:0xf')
    rs.append('v_and_b32 v3, 1, v1')
    rs.append('v_cmp_eq_u32 vcc, 0, v3')
    for k in range(4):
        rs.append(f'v_cndmask_b32 v{SR + 16 + k}, v{T + k}, v{SR + k}, vcc')
    for k in range(2):
        rs.append(f'v_cndmask_b32 v{SR + 20 + k}, v{SR + k}, v{T + k}, vcc')
    Sx, Sxx, Sy, Syy, Syg, Sys = (SR + 16 + k for k in range(6))
    r0 = SR
    inv = hexf(1.0 / 640)
    rs += f'''v_mul_f32 v{Sx}, {inv}, v{Sx}
    v_mul_f32 v{Sxx}, {inv}, v{Sxx}
    v_mul_f32 v{Sy}, {inv}, v{Sy}
    v_mul_f32 v{Syy}, {inv}, v{Syy}
    v_mul_f32 v{Syg}, {inv}, v{Syg}
    v_mul_f32 v{Sys}, {inv}, v{Sys}
    v_fma_f32 v{r0}, -v{Sx}, v{Sx}, v{Sxx}
    v_add_f32 v{r0}, {hexf(1e-5)}, v{r0}
    v_rsq_f32 v{r0}, v{r0}
    v_fma_f32 v{r0 + 1}, -v{Sx}, v{C}, v{Sy}
    v_mul_f32 v{r0 + 3}, v{Sx}, v{C + 2}
    v_fma_f32 v{r0 + 2}, v{r0}, v{r0 + 1}, v{C + 1}
    v_fma_f32 v{r0 + 3}, -2.0, v{Syg}, v{r0 + 3}
    v_fma_f32 v{r0 + 3}, v{Sx}, v{r0 + 3}, v{Syy}
    v_fma_f32 v{r0 + 4}, -v{Sx}, v{C + 3}, v{Sys}
    v_mul_f32 v{r0 + 5}, v{r0}, v{r0 + 3}
    v_fma_f32 v{r0 + 5}, 2.0, v{r0 + 4}, v{r0 + 5}
    v_fma_f32 v{r0 + 5}, v{r0}, v{r0 + 5}, v{C + 4}
    v_fma_f32 v{r0 + 5}, -v{r0 + 2}, v{r0 + 2}, v{r0 + 5}
    v_add_f32 v{r0 + 5}, {hexf(1e-5)}, v{r0 + 5}
    v_rsq_f32 v{r0 + 5}, v{r0 + 5}
    s_lshl_b32 s57, {sW}, 9
    s_add_u32 s57, s57, {RSB}
    v_mul_f32 v{r0 + 8}, v{r0 + 5}, v{r0}
    v_mul_f32 v{r0 + 9}, -v{r0 + 8}, v{Sx}
    v_mov_b32 v{r0 + 10}, v{r0 + 5}
    v_mul_f32 v{r0 + 11}, -v{r0 + 5}, v{r0 + 2}
    v_lshrrev_b32 v3, 1, v1
    v_lshlrev_b32 v3, 4, v3
    v_add_u32 v3, s57, v3
    ds_write_b128 v3, {v4(r0 + 8)}
    v_and_b32 v3, 31, v1
    v_lshlrev_b32 v3, 4, v3
    v_add_u32 v3, s57, v3
    ds_read_b128 {v4(RSC)}, v3'''.split('\n')
    rs = [x.strip() for x in rs]
    c0 = -2.0 * LOG2E * (2.0 / 3.141592653589793) ** 0.5
    c1 = c0 * 0.044715
    vW, vK, vO = [240, 241, 242], 243, 244
    e(f'''
    s_lshl_b32 s57, {sI}, 3
    s_lshl_b32 s58, {sW}, 1
    s_add_u32 s57, s57, s58
    s_mul_i32 s57, s57, 48
    s_mul_i32 s58, {sJ}, 3
    s_add_u32 s57, s57, s58
    s_lshl_b32 s57, s57, 10
    s_add_u32 s96, s57, {WS_HH}
    v_bfe_u32 v3, v1, 4, 1
    v_mul_u32_u24 v3, 49152, v3
    v_and_b32 v4, 15, v1
    v_lshl_add_u32 v3, v4, 4, v3
    v_lshrrev_b32 v4, 5, v1
    v_lshl_add_u32 v{vO}, v4, 8, v3
    v_lshlrev_b32 v4, 4, v4
    v_add_u32 v{vK}, {UVT}, v4
    s_mov_b32 s60, {hexf(c0)}
    s_mov_b32 s61, {hexf(c0)}
    s_mov_b32 s62, {hexf(c1)}
    s_mov_b32 s63, {hexf(c1)}
    v_mov_b32 v{vW[0]}, v2
    v_add_u32 v{vW[1]}, 40960, v2
    v_add_u32 v{vW[2]}, 81920, v2
    s_min_u32 s57, {sW}, 2
    s_mul_i32 s58, s57, 40960
    v_add_u32 v173, s58, v2
    v_and_b32 v4, 31, v1
    v_min_u32 v5, 2, v4
    v_mul_u32_u24 v5, 1280, v5
    v_lshrrev_b32 v3, 5, v1
    v_lshl_add_u32 v5, v3, 4, v5
    v_add_u32 v174, {VEC}, v5
    v_mul_u32_u24 v4, 384, v4
    v_lshl_add_u32 v4, v3, 4, v4
    s_lshl_b32 s57, s57, 7
    s_add_u32 s57, s57, {UVT}
    v_add_u32 v175, s57, v4
    ''')
    ACC = [176, 192, 208]
    KB_ = 128
    tt = [144, 146, 148, 150]
    WF = [[80, 84], [88, 92]]

    def epi(tau):
        Z = ACC[tau]
        out = []

        def consts(q):
            return [f'ds_read_b128 {v4(KB_ + 4 * n)}, v{vK} offset:{n * 384 + (32 * tau + 8 * q) * 4}' for n in range(4)]
        out += consts(0)
        for q in range(4):
            aff = []
            for r in range(4):
                aff.append(f'v_fma_f32 v{Z + 4 * q + r}, v{Z + 4 * q + r}, v{RSC}, v{KB_ + 12 + r}')
            for n, sc in ((0, RSC + 1), (1, RSC + 2), (2, RSC + 3)):
                for r in range(4):
                    aff.append(f'v_fmac_f32 v{Z + 4 * q + r}, v{KB_ + 4 * n + r}, v{sc}')
            out += ['M'] + aff[:8] + ['M'] + aff[8:]
            if q < 3:
                nxt = consts(q + 1)
            else:
                nxt = []
            a_, b_ = tt[(2 * q) & 3], tt[(2 * q + 1) & 3]
            za, zb = Z + 4 * q, Z + 4 * q + 2
            out += nxt
            out += [f'v_pk_mul_f32 {v2(a_)}, {v2(za)}, {v2(za)}', f'v_pk_mul_f32 {v2(b_)}, {v2(zb)}, {v2(zb)}',
                    f'v_pk_mul_f32 {v2(a_)}, {v2(a_)}, s[62:63]', f'v_pk_mul_f32 {v2(b_)}, {v2(b_)}, s[62:63]',
                    f'v_pk_add_f32 {v2(a_)}, {v2(a_)}, s[60:61]', f'v_pk_add_f32 {v2(b_)}, {v2(b_)}, s[60:61]',
                    f'v_pk_mul_f32 {v2(a_)}, {v2(a_)}, {v2(za)}', f'v_pk_mul_f32 {v2(b_)}, {v2(b_)}, {v2(zb)}',
                    'M', f'v_exp_f32 v{a_}, v{a_}', f'v_exp_f32 v{a_ + 1}, v{a_ + 1}', f'v_exp_f32 v{b_}, v{b_}', f'v_exp_f32 v{b_ + 1}, v{b_ + 1}',
                    f'v_pk_add_f32 {v2(a_)}, {v2(a_)}, 1.0 op_sel_hi:[1,0]', f'v_pk_add_f32 {v2(b_)}, {v2(b_)}, 1.0 op_sel_hi:[1,0]',
                    'M', f'v_rcp_f32 v{a_}, v{a_}', f'v_rcp_f32 v{a_ + 1}, v{a_ + 1}', f'v_rcp_f32 v{b_}, v{b_}', f'v_rcp_f32 v{b_ + 1}, v{b_ + 1}',
                    'M', f'v_mul_f32 v{za}, v{za}, v{a_}', f'v_mul_f32 v{za + 1}, v{za + 1}, v{a_ + 1}',
                    f'v_mul_f32 v{zb}, v{zb}, v{b_}', f'v_mul_f32 v{zb + 1}, v{zb + 1}, v{b_ + 1}',
                    f'v_cvt_pk_bf16_f32 v{Z + 2 * q}, v{za}, v{za + 1}', f'v_cvt_pk_bf16_f32 v{Z + 2 * q + 1}, v{zb}, v{zb + 1}', 'G']
            if q == 1:
                out.append(f's_add_u32 s57, s96, {1024 * tau}')
                out.append(f'buffer_store_dwordx4 {v4(Z)}, v{vO}, {srd(S_WS)}, s57 offen sc1')
            if q == 3:
                out.append(f's_add_u32 s57, s96, {1024 * tau}')
                out.append(f'buffer_store_dwordx4 {v4(Z + 4)}, v{vO}, {srd(S_WS)}, s57 offen offset:512 sc1')
        return out
    poll_group(e, FL_X1)
    e.ts(20)
    for s in range(NUP):
        for x in xload(s):
            e(x)
    e.ts(21)

    NB1 = 3
    WF1 = [[80, 84], [88, 92], [246, 250]]

    def wr1(s):
        return [f'ds_read_b128 {v4(WF1[s % NB1][t])}, v{vW[t]} offset:{s * 1024}' for t in range(2)]
    UB, UA = [128, 136, 144, 152], 128

    def ur(s):
        b = UB[s % 4]
        return [f'ds_read_b128 {a4(b)}, v173 offset:{s * 1024}', f'ds_read_b128 {a4(b + 4)}, v174 offset:{s * 32}']
    for x in wr1(0) + wr1(1) + ur(0) + ur(1) + ur(2):
        e(x)
    later = [xload(s) for s in range(NUP, 40)]
    for k, cs in enumerate(range(8)):
        later.insert(int(__import__('os').environ.get('SPOS', 8)) + 2 * k, sload(cs))
    fi = 0
    w2a = groups_of(w2loads(0, 12))
    for s in range(40):
        for t in range(2):
            Z = vr(ACC[t], 16)
            e(f'v_mfma_f32_32x32x16_bf16 {Z}, {v4(WF1[s % NB1][t])}, {xreg(s)}, {"0" if s == 0 else Z}')
            if t == 0 and later:
                for x in later.pop(0):
                    e(x)
            if t == 0 and s + 2 < 40:
                for x in wr1(s + 2):
                    e(x)
        U = vr(UA, 16)
        e(f'v_mfma_f32_32x32x16_bf16 {U}, {a4(UB[s % 4])}, {a4(UB[s % 4] + 4)}, {"0" if s == 0 else U}')
        if s + 3 < 40:
            for x in ur(s + 3):
                e(x)
        if s in (0, 9, 19, 29):
            e.ts(26 + min(3, (s + 1) // 10))
        if s < 8 and later:
            for x in later.pop(0):
                e(x)
        if s >= 28:
            for x in rs[fi:fi + 6]:
                e(x)
            fi += 6
            if w2a:
                for x in w2a.pop(0):
                    e(x)
    assert not later and not w2a
    for x in rs[fi:]:
        e(x)
    e('s_mov_b32 exec_lo, 7\n s_mov_b32 exec_hi, 7')
    for q in range(4):
        e(f'ds_write_b128 v175, {v4(UA + 4 * q)} offset:{32 * q}')
    e('s_mov_b64 exec, -1')
    e.wait(lg=0)
    e('s_barrier')
    e.ts(18)

    WF2 = [80, 84, 88, 92]

    def wr2(s):
        return f'ds_read_b128 {v4(WF2[s % 4])}, v{vW[2]} offset:{s * 1024}'
    for s in range(3):
        e(wr2(s))
    fill = epi(0) + epi(1)
    w2 = groups_of(w2loads(12, 40))
    Z = vr(ACC[2], 16)
    s = 0
    for x in fill:
        if x == 'M':
            e(f'v_mfma_f32_32x32x16_bf16 {Z}, {v4(WF2[s % 4])}, {xreg(s)}, {"0" if s == 0 else Z}')
            if s + 3 < 40:
                e(wr2(s + 3))
            s += 1
        elif x == 'G':
            for _ in range(4):
                if w2:
                    for y in w2.pop(0):
                        e(y)
        else:
            e(x)
    assert s == 40, s
    assert not w2
    e.ts(22)
    for x in epi(2):
        if x not in ('M', 'G'):
            e(x)
    e.force_wait(vm=0)
    e('s_barrier')
    e(f's_lshl_b32 s62, {sI}, 4\n s_add_u32 s62, s62, {sJ}')
    publish_flag(e, FL_HH, 's62')
    for x in w2loads(40, 60):
        e(x)


def p5(e):
    ksplit_setup(e)
    e(f'''
    v_lshrrev_b32 v4, 4, v1
    s_mul_i32 s63, s61, 160
    v_lshlrev_b32 v7, 3, v4
    ''')
    B2R = 200
    for a in range(5):
        e(f'buffer_load_dwordx2 {v2(B2R + 2 * a)}, v7, {srd(S_B2)}, s63 offen offset:{32 * a}')
    sr = ['s96', 's97', 's98', 's99']
    for tau in range(4):
        e(f'''
        s_add_u32 s57, {sW}, {tau}
        s_and_b32 s57, s57, 3
        s_add_u32 s57, s57, s62
        s_mul_i32 s57, s57, 48
        s_mul_i32 s58, {sW}, 12
        s_add_u32 s57, s57, s58
        s_lshl_b32 s57, s57, 10
        s_add_u32 {sr[tau]}, s57, {WS_HH}
        ''')
    BF, ACC = 16, 112
    order = [1, 2, 3, 0]

    def loads(n):
        tau = order[n]
        out = []
        for s in range(12):
            if s and s % 4 == 0:
                out.append(f's_add_u32 {sr[tau]}, {sr[tau]}, 4096')
            out.append(f'buffer_load_dwordx4 {v4(BF + ((n & 1) * 12 + s) * 4)}, v2, {srd(S_WS)}, {sr[tau]} offen offset:{(s % 4) * 1024} sc1')
        return out
    for tau in range(1, 4):
        e(f'''
        s_add_u32 s57, {sW}, {tau}
        s_and_b32 s57, s57, 3
        s_mul_i32 s57, s57, 15360
        s_add_u32 s57, s57, {RED5 + (tau - 1) * 5120}
        v_add_u32 v{210 + tau}, s57, v2
        ''')
    e(f'''
    s_mul_i32 s57, {sW}, 15360
    s_add_u32 s57, s57, {RED5}
    v_add_u32 v210, s57, v2
    v_lshlrev_b32 v6, 4, v4
    v_add_u32 v6, {M2}, v6
    ''')
    GBv, X = 16, 36
    T = ACC + 20
    OT = 61440
    e(f'''
    s_add_u32 s57, s62, {sW}
    s_lshl_b32 s57, s57, 4
    s_mul_i32 s63, s57, 1280
    s_mul_i32 s58, s61, 160
    s_add_u32 s63, s63, s58
    s_mul_i32 s58, {sW}, 2560
    s_add_u32 s58, s58, {OT}
    v_and_b32 v3, 15, v1
    v_mul_u32_u24 v7, 160, v3
    v_lshl_add_u32 v7, v4, 3, v7
    v_add_u32 v214, s58, v7            ; LDS write address
    ''')
    for k in range(3):
        e(f'''
        v_add_u32 v8, {64 * k}, v1
        v_mul_u32_u24 v9, 6554, v8
        v_lshrrev_b32 v9, 16, v9           ; token = G/10
        v_mul_u32_u24 v10, 10, v9
        v_sub_u32 v10, v8, v10             ; chunk
        v_lshlrev_b32 v10, 4, v10
        v_mul_u32_u24 v11, 160, v9
        v_add_u32 v11, v11, v10
        v_add_u32 v{215 + k}, s58, v11     ; LDS read address
        v_mul_u32_u24 v11, 1280, v9
        v_add_u32 v{218 + k}, v11, v10
        ''')
    e(f'''
    v_mov_b32 v8, 0xf0000000
    v_cmp_gt_u32 vcc, 32, v1
    v_cndmask_b32 v220, v8, v220, vcc
    v_cndmask_b32 v217, v215, v217, vcc
    ''')
    for G in range(192):
        assert (G * 6554) >> 16 == G // 10
    e.ts(23)
    poll_group(e, FL_HH)
    e.ts(24)
    for x in loads(0):
        e(x)
    e.ts(43)
    for n, tau in enumerate(order):
        nxt = loads(n + 1) if n + 1 < 4 else []
        per_step = [[] for _ in range(12)]
        k = 0
        for x in nxt:
            per_step[k].append(x)
            if x.startswith('buffer'):
                k += 1
        fill = []
        if n >= 1:
            pt = order[n - 1]
            fill = [f'ds_write_b128 v{210 + pt}, {v4(ACC + (5 * pt + a) * 4)} offset:{a * 1024}' for a in range(5)]
        late = []
        if n == 3:
            late += [f'ds_read_b128 {v4(GBv + 4 * a)}, v6 offset:{M2_GB - M2 + 64 * a}' for a in range(5)]
            for sl in range(3):
                for a in range(5):
                    late.append(f'ds_read_b128 {v4(T + (5 * sl + a) * 4)}, v210 offset:{sl * 5120 + a * 1024}')
            for k2 in range(10):
                late.append(f'v_lshlrev_b32 v{X + 2 * k2}, 16, v{X1P + k2}')
                late.append(f'v_and_b32 v{X + 2 * k2 + 1}, 0xffff0000, v{X1P + k2}')
            for k2 in range(10):
                t = 192 + 2 * (k2 & 3)
                late.append(f'v_lshlrev_b32 v{t}, 16, v{B2R + k2}')
                late.append(f'v_and_b32 v{t + 1}, 0xffff0000, v{B2R + k2}')
                late.append(f'v_pk_fma_f32 {v2(X + 2 * k2)}, {v2(GBv + 2 * k2)}, {v2(t)}, {v2(X + 2 * k2)}')
        li = 0
        for s in range(12):
            for a in range(5):
                r = v4(ACC + (5 * tau + a) * 4)
                c = '0' if s == 0 else r
                b = BF + ((n & 1) * 12 + s) * 4
                e(f'v_mfma_f32_16x16x32_bf16 {r}, {a4((5 * s + a) * 4)}, {v4(b)}, {c}')
                if s in (1, 2) and fill and a < 3:
                    e(fill.pop(0))
                if n == 3 and s >= 4:
                    for x in late[li:li + 2]:
                        e(x)
                    li += 2
            for x in per_step[s]:
                e(x)
            if n == 3 and s == 3:
                e.wait(lg=0)
                e('s_barrier')
        for x in late[li:]:
            e(x)
        e.ts(44 + n)
    e.ts(25)
    for k in range(10):
        e(f'v_pk_add_f32 {v2(T + 2 * k)}, {v2(T + 2 * k)}, {v2(T + 20 + 2 * k)}')
        e(f'v_pk_add_f32 {v2(ACC + 2 * k)}, {v2(ACC + 2 * k)}, {v2(T + 40 + 2 * k)}')
    for k in range(10):
        e(f'v_pk_add_f32 {v2(ACC + 2 * k)}, {v2(ACC + 2 * k)}, {v2(T + 2 * k)}')
    for k in range(10):
        e(f'v_pk_fma_f32 {v2(X + 2 * k)}, {v2(GBv + 2 * k)}, {v2(ACC + 2 * k)}, {v2(X + 2 * k)}')
    for k in range(10):
        e(f'v_cvt_pk_bf16_f32 v{64 + k}, v{X + 2 * k}, v{X + 2 * k + 1}')
    for a in range(5):
        e(f'ds_write_b64 v214, {v2(64 + 2 * a)} offset:{32 * a}')
    e.wait(lg=0)
    for k in range(3):
        e(f'ds_read_b128 {v4(80 + 4 * k)}, v{215 + k}')
    for k in range(3):
        e(f'buffer_store_dwordx4 {v4(80 + 4 * k)}, v{218 + k}, {srd(S_OUT)}, s63 offen')


def p3_all(e, ts, upto):
    p3(e)
    ts(5)
    if upto >= 4:
        p4(e)
        ts(6)
    if upto >= 5:
        p5(e)
        ts(7)
```
